```python
import torch

def _softmax(x, axis=-1):
    return torch.softmax(x, dim=axis)
def _gelu(x):
    return torch.nn.functional.gelu(x, approximate="tanh")
def _silu(x):
    return torch.nn.functional.silu(x)
def _sigmoid(x):
    return torch.sigmoid(x)
def _layernorm(x, axis=-1, eps=1e-5):
    m = x.mean(dim=axis, keepdim=True)
    v = x.var(dim=axis, keepdim=True, unbiased=False)
    return (x - m) / torch.sqrt(v + eps)
def _scatter_add(tgt, idx, src, axis=0):
    return tgt.clone().index_add_(axis, idx, src)
def _segment_sum(src, seg, n):
    out = torch.zeros((n,) + src.shape[1:], dtype=src.dtype)
    return out.index_add_(0, seg, src)
def _pad(x, pw):
    flat = tuple(v for pair in reversed(pw) for v in pair)
    return torch.nn.functional.pad(x, flat)

kernel_name = 'interleave_layers__sliding_local_dilated__mixer_s_mlp__prompt'

def setup_inputs():

    _w = (lambda a: (lambda t: t.to(torch.bfloat16) if t.is_floating_point() else t)(torch.as_tensor(a)))
    def _A_setup():
        B, S, D = 1, 2048, 512
        return {
            "x": _w((lambda *s: torch.randn(*s, dtype=torch.bfloat16) * 0.05)(B, S, D)),
            "wqkv": _w((lambda *s: torch.randn(*s, dtype=torch.bfloat16) * 0.1)(D, 3 * D)),
            "wo": _w((lambda *s: torch.randn(*s, dtype=torch.bfloat16) * 0.1)(D, D)),
        }
    _A_in = _A_setup()

    def _B_setup():
        B, S, D, F = 1, 2048, 512, 1792
        return {
            "x":  _w((lambda *s: torch.randn(*s, dtype=torch.bfloat16) * 0.05)(B, S, D)),
            "w1": _w((lambda *s: torch.randn(*s, dtype=torch.bfloat16) * 3.2)(D, D) * (D ** -0.5)),
            "w2": _w((lambda *s: torch.randn(*s, dtype=torch.bfloat16) * 3.2)(D, D) * (D ** -0.5)),
            "w3": _w((lambda *s: torch.randn(*s, dtype=torch.bfloat16) * 3.2)(D, F) * (D ** -0.5)),
            "w4": _w((lambda *s: torch.randn(*s, dtype=torch.bfloat16) * 3.2)(F, D) * (F ** -0.5)),
        }
    _B_in = _B_setup()

    return {
        "A_x": _A_in["x"],
        "A_wqkv": _A_in["wqkv"],
        "A_wo": _A_in["wo"],
        "B_x": _B_in["x"],
        "B_w1": _B_in["w1"],
        "B_w2": _B_in["w2"],
        "B_w3": _B_in["w3"],
        "B_w4": _B_in["w4"],
    }

def reference(A_x, A_wqkv, A_wo, B_x, B_w1, B_w2, B_w3, B_w4):
    def _A_ref(x, wqkv, wo):
        B, S, D = x.shape
        H = 32; Dh = D // H
        W, dil = 8, 2
        qkv = (lambda x, *d: x.permute(*d))((x @ wqkv).reshape(B, S, 3, H, Dh), 2, 0, 3, 1, 4)
        q, k, v = qkv[0], qkv[1], qkv[2]
        scale = Dh ** -0.5
        pos = torch.arange(S)
        off = torch.arange(W) * dil
        idx = pos[:, None] - off[None, :]
        mask = idx >= 0
        idx_c = torch.where(mask, idx, 0).reshape(-1)
        kg = k[:, :, idx_c, :].reshape(B, H, S, W, Dh)
        vg = v[:, :, idx_c, :].reshape(B, H, S, W, Dh)
        logits = torch.einsum("bhsd,bhswd->bhsw", q, kg) * scale
        logits = torch.where(mask[None, None, :, :], logits, -1e9)
        attn = _softmax(logits, axis=-1)
        o = torch.einsum("bhsw,bhswd->bhsd", attn, vg)
        return (lambda x, *d: x.permute(*d))(o, 0, 2, 1, 3).reshape(B, S, D) @ wo

    def _B_ref(x, w1, w2, w3, w4):
        B, S, D = x.shape
        h = _gelu(_layernorm(x, axis=-1) @ w1)
        c = D // 4
        g0 = _pad(h[:, :, 0*c:1*c], ((0, 0), (1, 0), (0, 0)))[:, :S, :]
        g1 = _pad(h[:, :, 1*c:2*c], ((0, 0), (0, 1), (0, 0)))[:, 1:, :]
        g2 = _pad(h[:, :, 2*c:3*c], ((0, 0), (2, 0), (0, 0)))[:, :S, :]
        g3 = _pad(h[:, :, 3*c:   ], ((0, 0), (0, 2), (0, 0)))[:, 2:, :]
        hs = torch.concatenate([g0, g1, g2, g3], axis=-1) @ w2
        x1 = x + hs
        h2 = _gelu(_layernorm(x1, axis=-1) @ w3) @ w4
        return x1 + h2

    x = A_x
    x = x + _A_ref(_layernorm(x, axis=-1), A_wqkv, A_wo)
    x = x + _B_ref(_layernorm(x, axis=-1), B_w1, B_w2, B_w3, B_w4)
    x = x + _A_ref(_layernorm(x, axis=-1), A_wqkv, A_wo)
    x = x + _B_ref(_layernorm(x, axis=-1), B_w1, B_w2, B_w3, B_w4)
    return x
```

```python
import re
REG = re.compile(r'^(-?)(abs\()?([vas])(\d+|\[(\d+):(\d+)\])\)?$')
def regs_of(tok):
    tok = tok.strip()
    if tok in ('vcc',): return [('s','vcc_lo'),('s','vcc_hi')]
    if tok in ('vcc_lo','vcc_hi','m0','exec_lo','exec_hi'): return [('s',tok)]
    if tok == 'exec': return [('s','exec_lo'),('s','exec_hi')]
    m = REG.match(tok)
    if not m: return []
    k = m.group(3)
    if m.group(5) is not None: return [(k,i) for i in range(int(m.group(5)), int(m.group(6))+1)]
    return [(k,int(m.group(4)))]
TRANS = ('v_exp_f32','v_log_f32','v_rcp_f32','v_rsq_f32','v_sqrt_f32','v_sin_f32','v_cos_f32')
class I:
    __slots__=('text','op','defs','uses','kind','meta','cregs')
    def __init__(s, text, meta=None):
        s.text=text; s.meta=meta or {}; s.cregs=[]
        t=text.split(';')[0].strip()
        s.defs=[]; s.uses=[]
        if t.endswith(':') or t=='' or t.startswith('.'):
            s.op=''; s.kind='label' if t.endswith(':') else 'none'; return
        p=t.split(None,1); op=p[0]; s.op=op
        rest=p[1] if len(p)>1 else ''
        ops=[]; cur=''; d=0
        for ch in rest:
            if ch in '[(' : d+=1
            if ch in '])' : d-=1
            if ch==',' and d==0: ops.append(cur); cur=''
            else: cur+=ch
        if cur.strip(): ops.append(cur)
        mods=''
        if ops:
            l=ops[-1].strip().split(None,1); ops[-1]=l[0]; mods=l[1] if len(l)>1 else ''
        R=[regs_of(o) for o in ops]
        fl=lambda L:[x for y in L for x in y]
        if op.startswith('v_mfma'):
            s.kind='mfma'; s.defs=R[0]; s.uses=fl(R[1:]); s.cregs=R[3]
        elif op.startswith('v_permlane') :
            s.kind='valu'; s.defs=fl(R[:2]); s.uses=fl(R[:2])
        elif op.startswith('v_'):
            s.kind='valu'; s.defs=R[0]; s.uses=fl(R[1:])
            if op.startswith(('v_fmac','v_dot2c','v_writelane')) or 'dpp' in op or 'row_' in mods: s.uses+=R[0]
            if op.startswith('v_cndmask') and len(ops)==3: s.uses+=regs_of('vcc')
        elif op.startswith('ds_read') or op.startswith('ds_bpermute'):
            s.kind='ds'; s.defs=R[0]; s.uses=fl(R[1:])
        elif op.startswith('ds_'):
            s.kind='ds'; s.uses=fl(R)
        elif op.startswith(('buffer_load','global_load')):
            s.kind='vm'
            if re.search(r'\blds\b', mods): s.uses=fl(R)+[('s','m0')]; s.meta['dma']=1
            else: s.defs=R[0]; s.uses=fl(R[1:])
        elif op.startswith(('buffer_store','global_store')):
            s.kind='vm'; s.uses=fl(R); s.meta['store']=R[0] if op.startswith('buffer') else R[1]
        elif op.startswith(('buffer_inv','buffer_wbl2')):
            s.kind='vm'
        elif op.startswith(('s_load','s_memtime','s_memrealtime')):
            s.kind='smem'; s.defs=R[0]; s.uses=fl(R[1:])
        elif op.startswith(('s_cmp','s_waitcnt','s_barrier','s_branch','s_cbranch','s_nop','s_endpgm','s_sleep','s_setprio','s_bitcmp')):
            s.kind='salu'; s.uses=fl(R)
        elif op.startswith('s_'):
            s.kind='salu'; s.defs=R[0]; s.uses=fl(R[1:])
        else: raise ValueError(text)
    def states(s):
        if s.kind in ('label','none'): return 0
        if s.op=='s_nop': return int(s.text.split()[1])+1
        return 1

def mfma_passes(op): return 8 if '32x32' in op else 4

def need(prod, cons):
    n=0
    pd=set(prod.defs)
    cu=set(cons.uses); cd=set(cons.defs)
    vec=lambda S:{r for r in S if r[0] in 'va'}
    sg=lambda S:{r for r in S if r[0]=='s'}
    if prod.kind=='valu':
        if vec(pd)&cu:
            if cons.kind=='mfma': n=max(n,2)
            if cons.op.startswith('v_permlane') or 'dpp' in cons.op or 'row_' in cons.text: n=max(n,2)
            if cons.op.startswith(('v_readlane','v_readfirstlane')): n=max(n,1)
            if prod.op.startswith(TRANS) and cons.kind=='valu' and not cons.op.startswith(TRANS): n=max(n,1)
            if prod.op.startswith(TRANS) and cons.kind in('ds','vm'): n=max(n,1)
        if prod.op.startswith('v_dot'):
            if vec(pd)&(cu|cd):
                same = cons.op==prod.op
                if same:
                    ops=[o for o in cons.text.split(';')[0].replace(',',' ').split()[1:]]
                    ab=set(regs_of(ops[1])+regs_of(ops[2]))
                    if vec(pd)&ab: n=max(n,3)
                else: n=max(n,3)
        if sg(pd)&cu:
            if cons.kind=='valu': n=max(n,4 if cons.op.startswith(('v_readlane','v_writelane')) else 2)
            if cons.kind=='vm': n=max(n,5)
            if cons.kind in('salu','smem'): n=max(n,1)
    if prod.kind=='mfma':
        p=mfma_passes(prod.op)
        if cons.kind=='mfma':
            ab=cu-set(cons.cregs) if set(cons.cregs) else cu
            ops=cons.text.split(';')[0].split(None,1)[1].split(',')
            ab=set(regs_of(ops[1])+regs_of(ops[2]))
            if pd&ab: n=max(n,p+4)
            if pd&set(cons.cregs):
                if not(prod.defs==cons.cregs and prod.op==cons.op): n=max(n,p+2)
            elif pd&cd: n=max(n,p+2)
        elif pd&(cu|cd): n=max(n,p+4)
        if cons.kind=='valu' and set(prod.cregs)&cd: n=max(n,p-1)
    if prod.kind=='salu' and ('s','m0') in pd and cons.meta.get('dma'): n=max(n,1)
    if prod.kind=='vm' and 'store' in prod.meta and len(prod.meta['store'])>=3:
        if set(prod.meta['store'])&cd: n=max(n,2)
    return n

class Asm:
    def __init__(s):
        s.L=[]
        s.vm=[]
        s.lg=[]
        s.optdepth=0; s.variant=None
        s.uid=0
    def label(s,name): s.L.append(I(name+':', {'var':s.variant}))
    def newlabel(s,p='L'): s.uid+=1; return f'{p}_{s.uid}'
    def raw(s,text,**meta):
        meta['var']=s.variant
        i=I(text,meta); s.L.append(i); return i
    def comment(s,t): s.L.append(I('; '+t, {'var':s.variant}))
    def _cnt(s,q,idx): return sum(1 for o in q[idx+1:] if not o['opt'])
    def _drop(s,q,idx): del q[:idx+1]
    def wait(s,vm=None,lg=None):
        parts=[]
        if vm is not None and vm>=0:
            parts.append(f'vmcnt({min(63,s._cnt(s.vm,vm))})'); s._drop(s.vm,vm)
        if lg is not None and lg>=0:
            parts.append(f'lgkmcnt({min(15,s._cnt(s.lg,lg))})'); s._drop(s.lg,lg)
        if parts: s.raw('s_waitcnt '+' '.join(parts))
    def wait_tags(s,tags):
        tags=set(tags); idx=-1
        for k,o in enumerate(s.vm):
            if o['tag'] in tags: idx=k
        done=[o['tag'] for o in s.vm[:idx+1]]
        s.wait(vm=idx); return done
    def wait_lg_all(s): s.wait(lg=len(s.lg)-1)
    def wait_vm_all(s): s.wait(vm=len(s.vm)-1)
    def e(s,text,tag=None,opt=False,**meta):
        i=I(text,dict(meta))
        touch=set(i.uses)|set(i.defs)
        vi=li=-1
        for k,o in enumerate(s.vm):
            if o['defs']&touch: vi=k
        for k,o in enumerate(s.lg):
            if o['defs']&touch: li=k
        if s.optdepth and (vi>=0 or li>=0) and not meta.get('optwait'):
            tgt=(s.vm[vi] if vi>=0 else s.lg[li])
            assert tgt['opt'], f'wait for mandatory op inside optional block: {text}'
            parts=[]
            if vi>=0: parts.append(f'vmcnt({min(63,len(s.vm)-1-vi)})'); s.vm[:]=[o for k,o in enumerate(s.vm) if not(k<=vi and o['opt'])]
            if li>=0: parts.append(f'lgkmcnt({min(15,len(s.lg)-1-li)})'); s.lg[:]=[o for k,o in enumerate(s.lg) if not(k<=li and o['opt'])]
            s.raw('s_waitcnt '+' '.join(parts))
        else:
            s.wait(vm=vi,lg=li)
        i.meta['var']=s.variant
        s.L.append(i)
        opt=opt or s.optdepth>0
        if i.kind=='vm': s.vm.append(dict(tag=tag,defs=set(i.defs),opt=opt))
        if i.kind=='ds': s.lg.append(dict(tag=tag,defs=set(i.defs),opt=opt))
        return i
    def begin_var(s,gid,alt,opt=True):
        assert s.variant is None
        s.variant=(gid,alt); s.optdepth+= 1 if opt else 0; s._vo=opt
    def end_var(s):
        s.variant=None; s.optdepth-= 1 if s._vo else 0
    def fix_hazards(s):
        MAXD=22
        total=0; changed=True
        while changed:
            changed=False
            for choice in (0,1,2):
                out=[]; hist=[]
                for c in s.L:
                    var=c.meta.get('var')
                    on = var is None or var[1]==choice
                    if on and c.kind not in('label','none'):
                        if c.op!='s_nop':
                            dist=0; req=0
                            for p in reversed(hist):
                                if p.kind in('valu','mfma','vm') or ('s','m0') in p.defs:
                                    n=need(p,c)
                                    if n>dist: req=max(req,n-dist)
                                dist+=p.states()
                                if dist>=MAXD: break
                            while req>0:
                                m=min(req,16); nop=I(f's_nop {m-1}',{'var':var}); out.append(nop); hist.append(nop)
                                req-=m; total+=1; changed=True
                        hist.append(c)
                        if len(hist)>MAXD+2: hist.pop(0)
                    out.append(c)
                s.L=out
        return total
    def text(s):
        out=[]
        for i in s.L:
            out.append(i.text if i.kind=='label' else '  '+i.text)
        return '\n'.join(out)+'\n'
```

```python
import sys, struct, math, os
sys.path.insert(0, os.path.dirname(__file__))
from asmlib import Asm

NAME = "interleave_layers__sliding_local_dilated__mixer_s_mlp__prompt"
def fbits(x): return struct.unpack('<I', struct.pack('<f', x))[0]
def fl(x): return hex(fbits(x))

FLAG, HFLAG, HH, HX, RB, RA, WSZ = 0, 0x1000, 0x10000, 0x40000, 0x100000, 0x300000, 0xA00000
PROF = 0xA00000
OOB = 0x7F000000
NSLOT = 39
MISC = NSLOT * 4096
RR, NM, HS, CSS = MISC + 0, MISC + 512, MISC + 1024, MISC + 2048
LDS_BYTES = 163840
sWS, sX, sWQ, sWO, sW1, sW2, sW3, sW4, sOUT, sDBG = 4, 8, 12, 16, 20, 24, 28, 32, 36, 40
sW, sJ, sC, sW1K, sOFF, sRA, sRB, sMODE, sTO, sT0, sT1 = 44, 45, 46, 47, 48, 49, 50, 51, 52, 53, 54
sODD, sHALF, sFLAG, sCNT, sHXS, sONES, sTB, sM0, sM1, sNT = 55, 56, 57, 58, 59, 60, 61, 62, 63, 64
sSTA, sSTB, sH2F, sH2H, sT2, sT3, sMYB, sHHS = 65, 66, 67, 68, 69, 70, 71, 72
sW1KP = 73
sTM = 74
def srd(n): return f"s[{n}:{n+3}]"
vLANE, vWD1, vWDQ, vWD3, vWDH, vXD = 1, 2, 3, 4, 5, 6
vXR = [7, 8, 9]
vWR = [[10, 11, 12], [13, 14, 15]]
vST, vSTO, vFL, vPROF, vHHST, vHXST, vHHLD, vHHW = 16, 17, 18, 19, 20, 21, 22, 23
vS1, vS2, vCS = 24, 25, 26
vT = [29, 30, 31]
RES, ACC0, ACC1 = 32, 48, 64
WB, XB = 80, 96
TMP = 112
BIG = 128
aCSQ, aCS1, aCS3, aDUMMY = 128, 140, 156, 255
def v(n, k=1): return f"v{n}" if k == 1 else f"v[{n}:{n+k-1}]"
def a(n, k=1): return f"a{n}" if k == 1 else f"a[{n}:{n+k-1}]"

C0 = -2.0 * math.sqrt(2.0 / math.pi) * math.log2(math.e)
C1 = C0 * 0.044715
EPS = 1e-5


class Gen:
    def __init__(g, stop=None, prof=False, cfg=None):
        g.A = Asm(); g.stop = stop; g.prof = prof
        g.cfg = dict(winA=7, winB=4, winC=5, maxpoll=400000)
        g.cfg.update(cfg or {})
        g.free = set(range(NSLOT)); g.slot = {}; g.visible = set(); g.landed = set()
        g.pend_free = []
        g.Q = []; g.nstamp = 0; g.stamps = []
        g.reserved = set()
        g.gid = 0

    def e(g, t, **k): return g.A.e(t, **k)
    def c(g, t): g.A.comment(t)
    def stamp(g, name):
        if not g.prof: return
        g.A.wait_lg_all()
        g.A.raw(f"s_memtime s[{sTM}:{sTM+1}]"); g.A.raw("s_waitcnt lgkmcnt(0)")
        g.e(f"v_writelane_b32 {v(vPROF)}, s{sTM}, {g.nstamp}")
        g.stamps.append(name); g.nstamp += 1
    def opt_begin(g, cond, alt=0):
        g.gid += 1; lab = g.A.newlabel('SK')
        for t in cond[:-1]: g.e(t)
        g.e(f"{cond[-1]} {lab}")
        g.A.begin_var(g.gid, alt); return lab
    def opt_end(g, lab): g.A.end_var(); g.A.label(lab)
    def w0_begin(g): return g.opt_begin([f"s_cmp_lg_u32 s{sW}, 0", "s_cbranch_scc1"])

    def alloc(g, unit, allowed=None):
        cand = sorted(x for x in g.free if (allowed is None and x not in g.reserved) or (allowed is not None and x in allowed))
        if not cand: return None
        s_ = cand[0]; g.free.remove(s_); g.slot[unit] = s_; return s_
    def dma(g, voff, srdn, sbase, goff, ldsaddr, tag, aux="", wreg=None):
        g.e(f"s_add_u32 m0, s{wreg or sW1K}, {ldsaddr}")
        if sbase is None: g.e(f"s_mov_b32 s{sOFF}, {goff}")
        else: g.e(f"s_add_u32 s{sOFF}, s{sbase}, {goff}")
        g.e(f"buffer_load_dwordx4 {v(voff)}, {srd(srdn)}, s{sOFF} offen {aux} lds".replace("  ", " "), tag=tag)
    def issue(g, u):
        if u.get('lds') is not None:
            g.dma(u['voff'], u['srd'], u['sbase'], u['goff'], u['lds'], u['name'], u.get('aux', ''), sW1KP); return True
        s_ = g.alloc(u['name'], u.get('allowed'))
        if s_ is None: return False
        g.dma(u['voff'], u['srd'], u['sbase'], u['goff'], s_ * 4096, u['name'], u.get('aux', '')); return True
    def pump(g, n=1):
        k = 0
        while k < n and g.Q:
            if not g.issue(g.Q[0]): break
            g.Q.pop(0); k += 1
        return k
    def force(g, names):
        names = set(names)
        while any(u['name'] in names for u in g.Q):
            assert g.issue(g.Q[0]), f"no LDS slot for {g.Q[0]['name']} (needed for {names}) free={g.free} slots={g.slot}"
            g.Q.pop(0)
    def release(g, unit): g.pend_free.append(unit)
    def barrier(g, need=(), lds_all=False, extra_tags=()):
        need = [n for n in need if n not in g.visible]
        g.force(need)
        before = [o['tag'] for o in g.A.vm]
        g.A.wait_tags(list(need) + list(extra_tags))
        if lds_all: g.A.wait_lg_all()
        g.A.raw("s_barrier")
        out = set(o['tag'] for o in g.A.vm)
        for n in g.slot:
            if n not in out and not any(u['name'] == n for u in g.Q): g.visible.add(n)
        for n in need: g.visible.add(n)
        pend = set(o['tag'] for o in g.A.lg)
        keep = []
        for u in g.pend_free:
            if u in pend: keep.append(u)
            else:
                g.free.add(g.slot.pop(u)); g.visible.discard(u)
        g.pend_free = keep
    def ldsref(g, regs, addr):
        w = addr >> 16; return regs[w], addr & 0xFFFF

    def uW(g, mat, u, tagp, allowed=None):
        if mat in ('o', '1', '2', '4'):
            return dict(name=f"{tagp}W{mat}_{u}", voff=vWD1, srd={'o': sWO, '1': sW1, '2': sW2, '4': sW4}[mat], sbase=None, goff=u * 32 * 1024, allowed=allowed)
        if mat in ('q', 'k', 'v'):
            return dict(name=f"{tagp}W{mat}_{u}", voff=vWDQ, srd=sWQ, sbase=None, goff=u * 32 * 3072 + 'qkv'.index(mat) * 1024, allowed=allowed)
        if mat in ('3a', '3b', '3c'):
            return dict(name=f"{tagp}W{mat}_{u}", voff=vWD3, srd=sW3, sbase=sODD, goff=u * 32 * 3584 + 'abc'.index(mat[1]) * 128, allowed=allowed)
        if mat == '3d':
            return dict(name=f"{tagp}W3d_{u}", voff=vWDH, srd=sW3, sbase=sHALF, goff=u * 64 * 3584, allowed=allowed)
    def uX(g, base, u, tagp, allowed=None, lds=None):
        return dict(name=f"{tagp}X_{u}", voff=vXD, srd=sWS, sbase=base, goff=u * 4096, aux="sc1", allowed=allowed, lds=lds)

    def windows(g, regs):
        g.e(f"v_add_u32 {v(regs[1])}, 0x10000, {v(regs[0])}")
        g.e(f"v_add_u32 {v(regs[2])}, 0x20000, {v(regs[0])}")
    def setup_wr(g, shape, perm):
        t0, t1, t2 = vT
        L = v(vLANE)
        for e_ in (0, 1):
            d = vWR[e_][0]
            if shape == 32: g.e(f"v_lshrrev_b32 {v(t0)}, 5, {L}")
            else: g.e(f"v_bfe_u32 {v(t0)}, {L}, 4, 1")
            g.e(f"v_bfe_u32 {v(t1)}, {L}, 2, 2")
            if perm:
                g.e(f"v_lshl_add_u32 {v(d)}, {v(t0)}, 2, {v(t1)}")
                if e_: g.e(f"v_add_u32 {v(d)}, 8, {v(d)}")
            else:
                g.e(f"v_lshl_add_u32 {v(d)}, {v(t0)}, 3, {v(t1)}")
                if e_: g.e(f"v_add_u32 {v(d)}, 4, {v(d)}")
            if shape == 16:
                g.e(f"v_lshrrev_b32 {v(t2)}, 5, {L}")
                g.e(f"v_lshl_add_u32 {v(d)}, {v(t2)}, 4, {v(d)}")
            g.e(f"v_lshlrev_b32 {v(d)}, 7, {v(d)}")
            g.e(f"v_and_b32 {v(t1)}, 2, {v(t1)}")
            if e_: g.e(f"v_xor_b32 {v(t0)}, 1, {v(t0)}")
            g.e(f"v_or_b32 {v(t0)}, {v(t0)}, {v(t1)}")
            if shape == 32:
                g.e(f"v_bfe_u32 {v(t1)}, {L}, 4, 1")
                g.e(f"v_lshl_add_u32 {v(t1)}, s{sNT}, 1, {v(t1)}")
                g.e(f"v_xor_b32 {v(t0)}, {v(t0)}, {v(t1)}")
            else:
                g.e(f"v_xor_b32 {v(t0)}, s{sW}, {v(t0)}")
            g.e(f"v_lshl_add_u32 {v(d)}, {v(t0)}, 5, {v(d)}")
            g.e(f"v_and_b32 {v(t1)}, 3, {L}")
            g.e(f"v_lshl_add_u32 {v(d)}, {v(t1)}, 3, {v(d)}")
            g.windows(vWR[e_])
    def setup_xr32(g, rowstride=1024):
        t0, t1, _ = vT; L = v(vLANE); d = vXR[0]
        g.e(f"v_and_b32 {v(t0)}, 31, {L}")
        g.e(f"v_lshl_add_u32 {v(t0)}, s{sTB}, 5, {v(t0)}")
        g.e(f"v_lshlrev_b32 {v(d)}, 4, {v(t0)}")
        g.e(f"v_lshrrev_b32 {v(t1)}, 5, {L}")
        g.e(f"v_mul_u32_u24 {v(t1)}, {rowstride}, {v(t1)}")
        g.e(f"v_add_u32 {v(d)}, {v(d)}, {v(t1)}")
        g.windows(vXR)

    def poll(g, load, cmp_fail):
        A = g.A; lp = A.newlabel('PL'); dn = A.newlabel('PD')
        A.raw(f"s_mov_b32 s{sCNT}, s{sTO}")
        A.label(lp)
        A.raw(load); A.raw(f"s_add_u32 s{sCNT}, s{sCNT}, 1")
        A.raw(f"s_cmp_gt_u32 s{sCNT}, {g.cfg['maxpoll']}")
        A.raw("s_waitcnt vmcnt(0)")
        A.raw(f"s_cbranch_scc1 {dn}")
        for t in cmp_fail: A.raw(t)
        A.raw(f"s_cbranch_vccnz {lp}")
        A.raw(f"s_mov_b32 s{sCNT}, 0")
        A.label(dn)
        A.raw(f"s_mov_b32 s{sTO}, s{sCNT}")
    def handoff(g, phase, stores, winB, winC, mid=None):
        A = g.A; t0, t1, t2 = vT
        g.pump(winB)
        g.barrier(extra_tags=stores, lds_all=True)
        g.stamp(f"h{phase}_acked")
        lab = g.w0_begin()
        if phase == 1:
            A.raw(f"s_lshl_b32 s{sT0}, s{sC}, 1")
            A.raw(f"s_sub_u32 s{sT0}, s{sT0}, 2")
            A.raw(f"v_min_u32 {v(t0)}, 5, {v(vLANE)}")
            A.raw(f"v_add_u32 {v(t0)}, s{sT0}, {v(t0)}")
            A.raw(f"v_max_i32 {v(t0)}, 0, {v(t0)}")
            A.raw(f"v_min_i32 {v(t0)}, 63, {v(t0)}")
            A.raw(f"v_lshlrev_b32 {v(t0)}, 2, {v(t0)}")
            A.raw(f"s_mov_b32 s{sT1}, 0x80808080")
            g.poll(f"buffer_load_dword {v(t1)}, {v(t0)}, {srd(sDBG)}, 0 offen sc1",
                   [f"v_and_b32 {v(t2)}, s{sT1}, {v(t1)}", f"v_cmp_ne_u32 vcc, s{sT1}, {v(t2)}"])
            A.raw(f"s_mul_i32 s{sT0}, s{sMYB}, 0x01010101")
            A.raw(f"v_cmp_eq_u32 vcc, s{sT0}, {v(t1)}")
            A.raw("s_nop 1")
            A.raw(f"s_and_b32 s{sT0}, vcc_lo, 12")
            A.raw(f"s_cmp_eq_u32 s{sT0}, 12")
            A.raw(f"s_cselect_b32 s{sMODE}, {0 if g.cfg.get('slow') else 1}, 0")
        sl = A.newlabel('SL'); dn = A.newlabel('SD')
        A.raw(f"v_mov_b32 {v(t0)}, {phase}")
        A.raw(f"v_mov_b32 {v(t1)}, 0")
        A.raw("s_mov_b64 exec, 1")
        A.raw(f"s_cmp_eq_u32 s{sMODE}, 0")
        A.raw(f"s_cbranch_scc1 {sl}")
        A.raw(f"buffer_store_dword {v(t0)}, {v(t1)}, {srd(sWS)}, s{sFLAG} offen")
        A.raw(f"s_branch {dn}")
        A.label(sl)
        A.raw("buffer_wbl2 sc1"); A.raw("s_waitcnt vmcnt(0)")
        A.raw(f"buffer_store_dword {v(t0)}, {v(t1)}, {srd(sWS)}, s{sFLAG} offen sc1")
        A.label(dn)
        A.raw("s_mov_b64 exec, -1")
        g.opt_end(lab)
        if g.stop == phase: return g.finish()
        g.pump(winC)
        if mid: mid()
        lab = g.w0_begin()
        g.poll(f"buffer_load_dword {v(t0)}, {v(vFL)}, {srd(sWS)}, 0 offen sc1", [f"v_cmp_gt_u32 vcc, {phase}, {v(t0)}"])
        fa = A.newlabel('FA')
        A.raw(f"s_cmp_lg_u32 s{sMODE}, 0"); A.raw(f"s_cbranch_scc1 {fa}")
        A.raw("buffer_inv sc1"); A.raw("s_waitcnt vmcnt(0)")
        A.label(fa)
        g.opt_end(lab)
        g.barrier(lds_all=True)
        g.stamp(f"h{phase}_go")
        return False
    def finish(g):
        if g.prof:
            g.stamp("end")
            g.e(f"s_lshl_b32 s{sT0}, s2, 10")
            g.e(f"s_add_u32 s{sT0}, s{sT0}, {PROF}")
            g.e(f"v_lshlrev_b32 {v(vT[0])}, 2, v0")
            g.e(f"buffer_store_dword {v(vPROF)}, {v(vT[0])}, {srd(sWS)}, s{sT0} offen")
        g.A.raw("s_waitcnt vmcnt(0)")
        g.A.raw("s_endpgm")
        g.done = True
        return True

    def gemm32(g, steps, groups, acc, zero, post=None, fill=None, pumps=None, depth=2, nfill=0, pre_bar=None):
        n = len(steps); fill = fill if fill is not None else []
        nb = 4
        def reads(k):
            st = steps[k]; wb = WB + 4 * (k % nb)
            wr, addr = st['w'][0], st['w'][1]()
            for e_ in (0, 1):
                r, imm = g.ldsref(wr[e_], addr)
                g.e(f"ds_read_b64_tr_b16 {v(wb + 2 * e_, 2)}, {v(r)} offset:{imm}", tag=st.get('wu'))
            if st['x'][0] == 'lds':
                dst = st['x'][2] if st['x'][2] is not None else XB + 4 * (k % nb)
                r, imm = g.ldsref(vXR, st['x'][1]())
                g.e(f"ds_read_b128 {v(dst, 4)}, {v(r)} offset:{imm}", tag=st.get('xu'))
                st['xr'] = dst
            else: st['xr'] = st['x'][1]
            st['wr'] = wb
            for u in st.get('rel', []): g.release(u)
        for i in range(-depth, n):
            k = i + depth
            if k < n:
                if k in groups:
                    if pre_bar: pre_bar(k)
                    g.barrier(groups[k])
                reads(k)
            if i >= 0:
                st = steps[i]
                cc = "0" if (zero and i == 0) else v(acc, 16)
                g.e(f"v_mfma_f32_32x32x16_bf16 {v(acc, 16)}, {v(st['wr'], 4)}, {v(st['xr'], 4)}, {cc}")
                if post: post(i, st)
                for _ in range(nfill):
                    if fill: fill.pop(0)()
                if pumps: g.pump(pumps(i))
    def stats_post(g, st):
        x = st['xr']
        for r in range(4):
            g.e(f"v_dot2_f32_bf16 {v(vS1)}, {v(x + r)}, s{sONES}, {v(vS1)}")
            g.e(f"v_dot2_f32_bf16 {v(vS2)}, {v(x + r)}, {v(x + r)}, {v(vS2)}")
    def cs_post(g, st, reg):
        for r in range(4): g.e(f"v_dot2_f32_bf16 {v(reg)}, {v(st['wr'] + r)}, s{sONES}, {v(reg)}")
    def cs32_finish(g, reg, adst, regs_sel=range(4)):
        t0, t1, t2 = vT; ops = []
        E = lambda t: ops.append(lambda: g.e(t))
        E(f"v_mov_b32 {v(t0)}, {v(reg)}")
        E(f"v_permlane32_swap_b32 {v(t0)}, {v(reg)}")
        E(f"v_add_f32 {v(t0)}, {v(t0)}, {v(reg)}")
        E(f"v_and_b32 {v(t1)}, 31, {v(vLANE)}")
        E(f"v_lshlrev_b32 {v(t1)}, 2, {v(t1)}")
        E(f"s_lshl_b32 s{sT2}, s{sW}, 8")
        E(f"s_add_u32 s{sT2}, s{sT2}, {CSS}")
        E(f"v_add_u32 {v(t1)}, s{sT2}, {v(t1)}")
        E(f"ds_write_b32 {v(t1)}, {v(t0)}")
        E(f"v_lshrrev_b32 {v(t1)}, 5, {v(vLANE)}")
        E(f"v_lshlrev_b32 {v(t1)}, 4, {v(t1)}")
        E(f"v_add_u32 {v(t1)}, s{sT2}, {v(t1)}")
        for n_, i in enumerate(regs_sel):
            E(f"ds_read_b128 {a(adst + 4 * n_, 4)}, {v(t1)} offset:{32 * i}")
        E(f"v_mov_b32 {v(reg)}, 0")
        return ops
    def stats32_finish(g, double):
        T = TMP + 10
        nm, k0, k1, ir, r, nmr = T, T + 1, T + 2, T + 3, T + 4, T + 5
        t0, t1, t2 = vT
        g.e(f"v_permlane32_swap_b32 {v(vS1)}, {v(vS2)}")
        g.e(f"v_add_f32 {v(t0)}, {v(vS1)}, {v(vS2)}")
        g.e(f"v_mov_b32 {v(t1)}, {v(t0)}")
        g.e(f"v_permlane32_swap_b32 {v(t0)}, {v(t1)}")
        g.e(f"v_mul_f32 {v(nm)}, {fl(-1.0 / 512)}, {v(t0)}")
        g.e(f"v_mul_f32 {v(t1)}, {fl(1.0 / 512)}, {v(t1)}")
        g.e(f"v_fma_f32 {v(t1)}, -{v(nm)}, {v(nm)}, {v(t1)}")
        g.e(f"v_max_f32 {v(t1)}, 0, {v(t1)}")
        g.e(f"v_add_f32 {v(t0)}, {fl(EPS)}, {v(t1)}")
        g.e(f"v_rsq_f32 {v(r)}, {v(t0)}")
        if double:
            g.e(f"v_mul_f32 {v(t1)}, {v(t1)}, {v(r)}")
            g.e(f"v_mul_f32 {v(t1)}, {v(t1)}, {v(r)}")
            g.e(f"v_add_f32 {v(t1)}, {fl(EPS)}, {v(t1)}")
            g.e(f"v_rsq_f32 {v(t1)}, {v(t1)}")
            g.e(f"v_mul_f32 {v(t0)}, {v(t1)}, {v(r)}")
        else:
            g.e(f"v_mov_b32 {v(t0)}, {v(r)}")
        g.e(f"v_rcp_f32 {v(ir)}, {v(t0)}")
        g.e(f"v_mul_f32 {v(k0)}, {fl(C0)}, {v(t0)}")
        g.e(f"v_mul_f32 {v(t1)}, {v(t0)}, {v(t0)}")
        g.e(f"v_mul_f32 {v(t1)}, {v(t1)}, {v(t0)}")
        g.e(f"v_mul_f32 {v(k1)}, {fl(C1)}, {v(t1)}")
        g.e(f"v_mul_f32 {v(nmr)}, {v(nm)}, {v(r)}")
        g.e(f"v_mov_b32 {v(vS1)}, 0"); g.e(f"v_mov_b32 {v(vS2)}, 0")
    def bc(g, r):
        return v(r & ~1, 2), r & 1
    def gelu_ops(g, acc, n, acs, out):
        T = TMP + 10; nm, k0, k1, ir = T, T + 1, T + 2, T + 3
        ops = []; E = lambda t: ops.append(lambda: g.e(t))
        def pk(op, d, s0, s1, s2=None):
            srcs = [s0, s1] + ([s2] if s2 is not None else [])
            txt = []; sel = []; hi = []
            for s_ in srcs:
                if isinstance(s_, tuple): t, b = g.bc(s_[0]); txt.append(t); sel.append(b); hi.append(b)
                else: txt.append(v(s_, 2)); sel.append(0); hi.append(1)
            E(f"{op} {v(d, 2)}, {', '.join(txt)} op_sel:[{','.join(map(str, sel))}] op_sel_hi:[{','.join(map(str, hi))}]")
        for p in range(0, n, 4):
            A_, B_ = TMP, TMP + 4
            for q, X in ((p, A_), (p + 2, B_)):
                E(f"v_accvgpr_read_b32 {v(X)}, {a(acs + q)}"); E(f"v_accvgpr_read_b32 {v(X + 1)}, {a(acs + q + 1)}")
            for q, X in ((p, A_), (p + 2, B_)): pk("v_pk_fma_f32", acc + q, X, (nm,), acc + q)
            for q, X in ((p, A_), (p + 2, B_)): pk("v_pk_mul_f32", X, acc + q, acc + q)
            for q, X in ((p, A_), (p + 2, B_)): pk("v_pk_fma_f32", X, X, (k1,), (k0,))
            for q, X in ((p, A_), (p + 2, B_)): pk("v_pk_mul_f32", X, X, acc + q)
            for q, X in ((p, A_), (p + 2, B_)):
                E(f"v_exp_f32 {v(X)}, {v(X)}"); E(f"v_exp_f32 {v(X + 1)}, {v(X + 1)}")
            for q, X in ((p, A_), (p + 2, B_)): pk("v_pk_fma_f32", X, X, (ir,), (ir,))
            for q, X in ((p, A_), (p + 2, B_)):
                E(f"v_rcp_f32 {v(X)}, {v(X)}"); E(f"v_rcp_f32 {v(X + 1)}, {v(X + 1)}")
            for q, X in ((p, A_), (p + 2, B_)): pk("v_pk_mul_f32", X, X, acc + q)
            for q, X in ((p, A_), (p + 2, B_)): E(f"v_cvt_pk_bf16_f32 {v(out + q // 2)}, {v(X)}, {v(X + 1)}")
        return ops
    def pack16(g, acc, out):
        for q in range(8): g.e(f"v_cvt_pk_bf16_f32 {v(out + q)}, {v(acc + 2 * q)}, {v(acc + 2 * q + 1)}")
    def store_x(g, pk, sbase, tag):
        g.e(f"buffer_store_dwordx4 {v(pk, 4)}, {v(vST)}, {srd(sWS)}, s{sbase} offen", tag=tag)
        g.e(f"buffer_store_dwordx4 {v(pk + 4, 4)}, {v(vST)}, {srd(sWS)}, s{sbase} offen offset:2048", tag=tag)
    def touch(g, srdn, nlines, sexpr, wave):
        lab = g.opt_begin([f"s_cmp_lg_u32 s{sW}, {wave}", "s_cbranch_scc1"])
        for t in sexpr: g.A.raw(t)
        g.A.raw(f"v_lshlrev_b32 {v(vT[0])}, 7, {v(vLANE)}")
        if nlines < 64:
            g.A.raw(f"s_mov_b64 exec, {hex((1 << nlines) - 1) if nlines <= 32 else -1}")
            if nlines > 32: g.A.raw(f"s_mov_b32 exec_hi, {hex((1 << (nlines - 32)) - 1)}")
        g.A.raw(f"buffer_load_dword {a(aDUMMY)}, {v(vT[0])}, {srd(srdn)}, s{sT0} offen")
        if nlines < 64: g.A.raw("s_mov_b64 exec, -1")
        g.opt_end(lab)

    def prologue(g):
        A = g.A; t0, t1, t2 = vT; L = v(vLANE)
        A.raw("s_cmp_ge_u32 s2, 256"); A.raw("s_cbranch_scc1 L_END")
        for s_, off in ((sX, 0), (sWQ, 8), (sWS, 80), (sWO, 16), (sW1, 32), (sW2, 40), (sW3, 48), (sW4, 56), (sOUT, 64), (sDBG, 72)):
            A.raw(f"s_load_dwordx2 s[{s_}:{s_+1}], s[0:1], {off}")
        g.e(f"v_lshrrev_b32 {L}, 6, v0")
        g.e(f"v_readfirstlane_b32 s{sW}, {L}")
        g.e(f"v_and_b32 {L}, 63, v0")
        g.e(f"s_lshr_b32 s{sJ}, s2, 3"); g.e(f"s_and_b32 s{sJ}, s{sJ}, 7")
        g.e(f"s_and_b32 s{sC}, s2, 7"); g.e(f"s_lshl_b32 s{sC}, s{sC}, 2")
        g.e(f"s_lshr_b32 s{sT0}, s2, 6"); g.e(f"s_add_u32 s{sC}, s{sC}, s{sT0}")
        g.e(f"s_lshl_b32 s{sW1K}, s{sW}, 10"); g.e(f"s_mul_i32 s{sW1KP}, s{sW}, 1088")
        g.e(f"s_lshr_b32 s{sTB}, s{sW}, 1"); g.e(f"s_and_b32 s{sNT}, s{sW}, 1")
        for s_, n in ((sX, 2 << 20), (sWQ, 512 * 3072), (sWS, WSZ + (0x40000 if g.prof else 0)), (sWO, 1 << 19), (sW1, 1 << 19), (sW2, 1 << 19),
                      (sW3, 512 * 3584), (sW4, 1792 * 1024), (sOUT, 2 << 20), (sDBG, 256)):
            g.e(f"s_mov_b32 s{s_+2}, {n}"); g.e(f"s_mov_b32 s{s_+3}, 0x20000")
        g.e(f"s_mov_b32 s{sONES}, 0x3f803f80"); g.e(f"s_mov_b32 s{sTO}, 0"); g.e(f"s_mov_b32 s{sMODE}, 0")
        if g.prof: g.e(f"v_mov_b32 {v(vPROF)}, 0")
        g.e(f"v_lshrrev_b32 {v(t0)}, 3, {L}")
        g.e(f"v_lshl_add_u32 {v(t0)}, s{sW}, 3, {v(t0)}")
        g.e(f"v_bfe_u32 {v(t1)}, {L}, 4, 1")
        g.e(f"v_lshlrev_b32 {v(t1)}, 1, {v(t1)}")
        g.e(f"v_lshrrev_b32 {v(t2)}, 5, {L}")
        g.e(f"v_xor_b32 {v(t2)}, s{sNT}, {v(t2)}")
        g.e(f"v_or_b32 {v(t1)}, {v(t1)}, {v(t2)}")
        g.e(f"v_lshlrev_b32 {v(t1)}, 1, {v(t1)}")
        g.e(f"v_and_b32 {v(t2)}, 7, {L}")
        g.e(f"v_xor_b32 {v(t1)}, {v(t1)}, {v(t2)}")
        g.e(f"v_lshlrev_b32 {v(t1)}, 4, {v(t1)}")
        for d, rs in ((vWD1, 1024), (vWDQ, 3072), (vWD3, 3584)):
            g.e(f"v_mul_u32_u24 {v(d)}, {rs}, {v(t0)}")
            g.e(f"v_add_u32 {v(d)}, {v(d)}, {v(t1)}")
        g.e(f"v_lshrrev_b32 {v(t0)}, 2, {L}")
        g.e(f"v_lshl_add_u32 {v(t0)}, s{sW}, 4, {v(t0)}")
        g.e(f"v_mul_u32_u24 {v(vWDH)}, 3584, {v(t0)}")
        g.e(f"v_and_b32 {v(t1)}, 3, {L}")
        g.e(f"v_lshl_add_u32 {v(vWDH)}, {v(t1)}, 4, {v(vWDH)}")
        g.e(f"v_lshlrev_b32 {v(vXD)}, 4, v0")
        A.raw("s_waitcnt lgkmcnt(0)")
        g.stamp("start")
        g.touch(sWQ, 48, [f"s_mul_i32 s{sT0}, s2, 6144"], 0)
        lab = g.opt_begin([f"s_cmp_lg_u32 s{sW}, 1", "s_cbranch_scc1"])
        A.raw(f"s_getpc_b64 s[{sM0}:{sM1}]")
        A.raw(f"s_lshr_b32 s{sT0}, s2, 3"); A.raw(f"s_mul_i32 s{sT0}, s{sT0}, {g.cfg.get('codelines', 20) * 128}")
        A.raw(f"v_lshlrev_b32 {v(t0)}, 7, {L}"); A.raw(f"v_add_u32 {v(t0)}, s{sT0}, {v(t0)}")
        A.raw(f"s_mov_b32 s{sT1}, CODE_BYTES"); A.raw(f"v_min_u32 {v(t0)}, s{sT1}, {v(t0)}")
        A.raw(f"s_mov_b64 exec, {hex((1 << g.cfg.get('codelines', 20)) - 1)}")
        A.raw(f"global_load_dword {a(aDUMMY)}, {v(t0)}, s[{sM0}:{sM1}]")
        A.raw("s_mov_b64 exec, -1")
        g.opt_end(lab)
        g.e(f"s_lshl_b32 s{sT2}, s{sC}, 16"); g.e(f"s_sub_u32 s{sT2}, s{sT2}, 16384")
        g.e(f"v_add_u32 {v(vXR[2])}, s{sT2}, {v(vXD)}")
        g.e(f"s_mul_i32 s{sT3}, s{sW}, 1040")
        for i in range(20):
            g.e(f"s_add_u32 m0, s{sT3}, {i * 4160}")
            g.e(f"s_mov_b32 s{sOFF}, 0") if i == 0 else g.e(f"v_add_u32 {v(vXR[2])}, 0x1000, {v(vXR[2])}")
            g.e(f"buffer_load_dwordx4 {v(vXR[2])}, {srd(sX)}, 0 offen lds", tag="x0")
        for s_ in range(21): g.free.remove(s_); g.slot[f"x0_{s_}"] = s_
        g.e(f"s_lshl_b32 s{sFLAG}, s{sC}, 7"); g.e(f"s_lshl_b32 s{sT0}, s{sJ}, 2"); g.e(f"s_add_u32 s{sFLAG}, s{sFLAG}, s{sT0}")
        g.e(f"s_lshr_b32 s{sT0}, s{sJ}, 1")
        g.e(f"s_and_b32 s{sT1}, s{sT0}, 1"); g.e(f"s_lshl_b32 s{sT1}, s{sT1}, 1")
        g.e(f"s_add_u32 s{sT2}, s{sC}, 1"); g.e(f"s_sub_u32 s{sT2}, s{sT2}, s{sT1}")
        g.e(f"s_lshl_b32 s{sHHS}, s{sT2}, 11"); g.e(f"s_lshl_b32 s{sT0}, s{sT0}, 9"); g.e(f"s_add_u32 s{sHHS}, s{sHHS}, s{sT0}")
        g.e(f"s_and_b32 s{sT0}, s{sJ}, 1"); g.e(f"s_lshl_b32 s{sT0}, s{sT0}, 7"); g.e(f"s_add_u32 s{sHHS}, s{sHHS}, s{sT0}")
        g.e(f"s_add_u32 s{sHHS}, s{sHHS}, {HH}")
        g.e(f"s_cmp_lt_u32 s{sT2}, 32"); g.e(f"s_cselect_b32 s{sHHS}, s{sHHS}, {OOB}")
        lab = g.opt_begin([f"s_cmp_lg_u32 s{sW}, 2", "s_cbranch_scc1"])
        A.raw(f"v_mov_b32 {v(TMP)}, 0"); A.raw(f"v_lshlrev_b32 {v(t0)}, 12, {L}"); A.raw("s_mov_b64 exec, 3")
        A.raw(f"buffer_store_dword {v(TMP)}, {v(t0)}, {srd(sWS)}, s{sFLAG} offen sc1")
        A.raw("s_mov_b64 exec, -1")
        for r in range(4): A.raw(f"v_mov_b32 {v(TMP + 4 + r)}, -1")
        A.raw(f"v_and_b32 {v(t0)}, 7, {L}"); A.raw(f"v_lshlrev_b32 {v(t0)}, 4, {v(t0)}")
        A.raw(f"v_bfe_u32 {v(t1)}, {L}, 3, 1"); A.raw(f"v_lshl_add_u32 {v(t0)}, {v(t1)}, 8, {v(t0)}")
        A.raw(f"v_bfe_u32 {v(t1)}, {L}, 4, 1"); A.raw(f"v_lshl_add_u32 {v(t0)}, {v(t1)}, 16, {v(t0)}")
        A.raw("s_mov_b64 exec, 0xffffffff")
        A.raw(f"s_mov_b32 exec_hi, 0")
        A.raw(f"buffer_store_dwordx4 {v(TMP + 4, 4)}, {v(t0)}, {srd(sWS)}, s{sHHS} offen sc1")
        A.raw("s_mov_b64 exec, -1")
        g.opt_end(lab)
        g.e(f"s_lshl_b32 s{sT0}, s{sJ}, 7")
        for s_ in (sWQ, sWO, sW1, sW2, sW4):
            g.e(f"s_add_u32 s{s_}, s{s_}, s{sT0}"); g.e(f"s_addc_u32 s{s_+1}, s{s_+1}, 0"); g.e(f"s_sub_u32 s{s_+2}, s{s_+2}, s{sT0}")
        g.e(f"s_mul_i32 s{sT0}, s{sJ}, 448")
        g.e(f"s_add_u32 s{sW3}, s{sW3}, s{sT0}"); g.e(f"s_addc_u32 s{sW3+1}, s{sW3+1}, 0"); g.e(f"s_sub_u32 s{sW3+2}, s{sW3+2}, s{sT0}")
        for s_ in range(16):
            for m in 'qkv': g.Q.append(g.uW(m, s_, 'a', allowed=set(range(21, NSLOT))))
        g.pump(18)
        g.e(f"s_and_b32 s{sT0}, s{sJ}, 1"); g.e(f"s_lshl_b32 s{sODD}, s{sT0}, 6")
        g.e(f"s_cmp_eq_u32 s{sT0}, 0"); g.e(f"s_cselect_b32 s{sHALF}, 384, 0")
        g.e(f"s_mul_i32 s{sRA}, s{sC}, 229376"); g.e(f"s_add_u32 s{sRA}, s{sRA}, {RA}")
        g.e(f"s_lshl_b32 s{sRB}, s{sC}, 16"); g.e(f"s_add_u32 s{sRB}, s{sRB}, {RB}")
        g.e(f"s_lshl_b32 s{sT1}, s{sJ}, 13")
        g.e(f"s_add_u32 s{sSTA}, s{sRA}, s{sT1}"); g.e(f"s_add_u32 s{sSTB}, s{sRB}, s{sT1}")
        g.e(f"s_mul_i32 s{sT1}, s{sJ}, {224 * 128}"); g.e(f"s_add_u32 s{sT1}, s{sT1}, s{sRA}")
        g.e(f"s_lshl_b32 s{sT2}, s{sODD}, 6"); g.e(f"s_add_u32 s{sH2F}, s{sT1}, s{sT2}")
        g.e(f"s_lshl_b32 s{sT2}, s{sHALF}, 6"); g.e(f"s_add_u32 s{sH2H}, s{sT1}, s{sT2}")
        g.e(f"s_lshl_b32 s{sHXS}, s{sC}, 14"); g.e(f"s_add_u32 s{sHXS}, s{sHXS}, {HX}")
        g.e(f"s_cmp_eq_u32 s{sC}, 0"); g.e(f"s_cselect_b32 s{sHXS}, {OOB}, s{sHXS}")
        g.e(f"s_getreg_b32 s{sMYB}, hwreg(HW_REG_XCC_ID)"); g.e(f"s_and_b32 s{sMYB}, s{sMYB}, 15"); g.e(f"s_or_b32 s{sMYB}, s{sMYB}, 0x80")
        g.e(f"v_and_b32 {v(t0)}, 31, {L}")
        g.e(f"v_lshl_add_u32 {v(t0)}, s{sTB}, 5, {v(t0)}")
        g.e(f"v_lshrrev_b32 {v(t1)}, 5, {L}")
        g.e(f"v_lshlrev_b32 {v(vST)}, 4, {v(t0)}")
        g.e(f"v_lshl_add_u32 {v(vST)}, {v(t1)}, 10, {v(vST)}")
        g.e(f"s_lshl_b32 s{sT0}, s{sNT}, 12"); g.e(f"v_add_u32 {v(vST)}, s{sT0}, {v(vST)}")
        g.e(f"v_lshlrev_b32 {v(vSTO)}, 4, {L}"); g.e(f"s_lshl_b32 s{sT0}, s{sW}, 11"); g.e(f"v_add_u32 {v(vSTO)}, s{sT0}, {v(vSTO)}")
        g.e(f"v_and_b32 {v(vFL)}, 7, {L}"); g.e(f"v_lshlrev_b32 {v(vFL)}, 2, {v(vFL)}")
        g.e(f"s_lshl_b32 s{sT0}, s{sC}, 7"); g.e(f"v_add_u32 {v(vFL)}, s{sT0}, {v(vFL)}")
        g.e(f"s_lshr_b32 s{sT0}, s{sJ}, 2"); g.e(f"s_add_u32 s{sT0}, s{sT0}, 1")
        g.e(f"s_sub_u32 s{sT1}, 64, s{sT0}"); g.e(f"s_bitcmp1_b32 s{sJ}, 1"); g.e(f"s_cselect_b32 s{sT1}, 0, s{sT1}")
        g.e(f"v_subrev_u32 {v(t2)}, s{sT1}, {v(t0)}")
        g.e(f"v_cmp_gt_u32 s[{sM0}:{sM1}], s{sT0}, {v(t2)}")
        g.e(f"v_lshlrev_b32 {v(t2)}, 8, {v(t2)}")
        g.e(f"v_lshl_add_u32 {v(t2)}, {v(t1)}, 4, {v(t2)}")
        g.e(f"s_lshl_b32 s{sT1}, s{sNT}, 6"); g.e(f"v_add_u32 {v(t2)}, s{sT1}, {v(t2)}")
        g.e(f"v_mov_b32 {v(vHHST)}, {OOB}")
        g.e(f"v_cndmask_b32 {v(vHHST)}, {v(vHHST)}, {v(t2)}, s[{sM0}:{sM1}]")
        g.e(f"v_subrev_u32 {v(t2)}, 48, {v(t0)}")
        g.e(f"v_cmp_gt_u32 s[{sM0}:{sM1}], 16, {v(t2)}")
        g.e(f"v_lshlrev_b32 {v(t2)}, 4, {v(t2)}")
        g.e(f"v_lshl_add_u32 {v(t2)}, {v(t1)}, 8, {v(t2)}")
        g.e(f"s_lshl_b32 s{sT0}, s{sJ}, 1"); g.e(f"s_add_u32 s{sT0}, s{sT0}, s{sNT}"); g.e(f"s_lshl_b32 s{sT0}, s{sT0}, 10")
        g.e(f"s_add_u32 s{sT1}, s{sC}, 1"); g.e(f"s_lshl_b32 s{sT1}, s{sT1}, 14"); g.e(f"s_add_u32 s{sT0}, s{sT0}, s{sT1}")
        g.e(f"s_add_u32 s{sT0}, s{sT0}, {HX}")
        g.e(f"s_cmp_eq_u32 s{sC}, 31"); g.e(f"s_cselect_b32 s{sT0}, {OOB}, s{sT0}")
        g.e(f"v_add_u32 {v(t2)}, s{sT0}, {v(t2)}")
        g.e(f"v_mov_b32 {v(vHXST)}, {OOB}")
        g.e(f"v_cndmask_b32 {v(vHXST)}, {v(vHXST)}, {v(t2)}, s[{sM0}:{sM1}]")
        g.e(f"s_lshr_b32 s{sT0}, s{sW}, 1"); g.e(f"s_add_u32 s{sT0}, s{sT0}, 1"); g.e(f"s_lshl_b32 s{sT0}, s{sT0}, 4")
        g.e(f"v_and_b32 {v(t0)}, 15, {L}"); g.e(f"v_lshrrev_b32 {v(t1)}, 4, {L}")
        g.e(f"v_cmp_gt_u32 s[{sM0}:{sM1}], s{sT0}, {L}")
        g.e(f"v_lshlrev_b32 {v(t2)}, 4, {L}")
        g.e(f"s_lshl_b32 s{sT1}, s{sC}, 11"); g.e(f"s_lshl_b32 s{sT2}, s{sW}, 9"); g.e(f"s_add_u32 s{sT1}, s{sT1}, s{sT2}"); g.e(f"s_add_u32 s{sT1}, s{sT1}, {HH}")
        g.e(f"s_mul_i32 s{sT2}, s{sNT}, 31"); g.e(f"s_cmp_eq_u32 s{sC}, s{sT2}"); g.e(f"s_cselect_b32 s{sT1}, {OOB}, s{sT1}")
        g.e(f"v_add_u32 {v(t2)}, s{sT1}, {v(t2)}")
        g.e(f"v_mov_b32 {v(vHHLD)}, {OOB}")
        g.e(f"v_cndmask_b32 {v(vHHLD)}, {v(vHHLD)}, {v(t2)}, s[{sM0}:{sM1}]")
        g.e(f"v_lshl_add_u32 {v(t0)}, s{sW}, 4, {v(t0)}"); g.e(f"v_mul_u32_u24 {v(t0)}, 1088, {v(t0)}")
        g.e(f"s_sub_u32 s{sT1}, 1, s{sTB}"); g.e(f"s_cmp_eq_u32 s{sNT}, 0"); g.e(f"s_cselect_b32 s{sT1}, s{sT1}, 66")
        g.e(f"v_add_u32 {v(t1)}, s{sT1}, {v(t1)}")
        g.e(f"v_lshl_add_u32 {v(vHHW)}, {v(t1)}, 4, {v(t0)}")
        for r in (vS1, vS2, vCS, vCS + 1, vCS + 2): g.e(f"v_mov_b32 {v(r)}, 0")

    def p1(g, layer):
        A = g.A; t0, t1, t2 = vT; L = v(vLANE); P = 'ab'[layer]
        g.c(f"===== P1 layer {layer}: LN + QKV (16x16x32, wave = head) =====")
        ACC = BIG
        def acc(m, b): return ACC + {'q': -4, 'k': 16, 'v': 36}[m] + 4 * b
        XF = [184, 204]; WF = [224, 236]
        first = layer == 0
        blocks = [1, 2, 3, 4, 0] if first else [1, 2, 3, 4]
        def wdst(m, s_):
            if first or m == 'q': return ('v', WF[s_ & 1] + 4 * 'qkv'.index(m))
            return ('a', (0 if m == 'k' else 64) + 4 * s_)
        R = lambda k, n, c=1: (v if k == 'v' else a)(n, c)
        def rd_w(m, s_, e_):
            u = f"{P}W{m}_{s_}"; r, imm = g.ldsref(vWR[e_], g.slot[u] * 4096); k, n = wdst(m, s_)
            g.e(f"ds_read_b64_tr_b16 {R(k, n + 2 * e_, 2)}, {v(r)} offset:{imm}", tag=u)
            if e_: g.release(u)
        def rd_x(b, s_):
            d = XF[s_ & 1] + 4 * b
            if first:
                r, imm = (vXR[0], b * 16640 + s_ * 64) if b < 2 else (vXR[1], (b - 2) * 16640 + s_ * 64)
                g.e(f"ds_read_b128 {v(d, 4)}, {v(r)} offset:{imm}", tag="x0_0")
            else:
                u = f"{P}1X_{s_}"
                g.e(f"ds_read_b128 {v(d, 4)}, {v(vXR[0])} offset:{g.slot[u] * 4096 + (b - 1) * 256}", tag=u)
                if b == 4: g.release(u)
        def reads(s_):
            l = [lambda: rd_w('q', s_, 0), lambda: rd_w('q', s_, 1), lambda: rd_x(1, s_), lambda: rd_w('k', s_, 0), lambda: rd_w('k', s_, 1),
                 lambda: rd_w('v', s_, 0), lambda: rd_w('v', s_, 1)]
            l += [(lambda b=b: rd_x(b, s_)) for b in blocks[1:]]
            return l
        def units(s_): return [f"{P}W{m}_{s_}" for m in 'qkv'] + ([] if first else [f"{P}1X_{s_}"])
        vSA = TMP + 8; XS = [TMP, TMP + 4]
        if first:
            g.e(f"s_add_u32 s{sT0}, s{sW}, 1"); g.e(f"s_mul_i32 s{sT0}, s{sT0}, 16640"); g.e(f"v_add_u32 {v(vSA)}, s{sT0}, {v(vXR[0])}")
        else:
            g.e(f"s_lshl_b32 s{sT0}, s{sW}, 8"); g.e(f"v_add_u32 {v(vSA)}, s{sT0}, {v(vXR[0])}")
        def rd_s(s_):
            imm = s_ * 64 if first else g.slot[f"{P}1X_{s_}"] * 4096
            g.e(f"ds_read_b128 {v(XS[s_ & 1], 4)}, {v(vSA)} offset:{imm}", tag="x0_0" if first else f"{P}1X_{s_}")
        GS = 2
        def grp(s_): return [u for k in range(s_, min(16, s_ + GS)) for u in units(k)]
        if first:
            g.barrier(grp(0), extra_tags=["x0"])
            g.stamp("x_landed")
            lab = g.opt_begin([f"s_cmp_lg_u32 s{sW}, 2", "s_cbranch_scc1"])
            A.raw(f"s_lshl_b32 s{sT0}, s{sC}, 3"); A.raw(f"s_add_u32 s{sT0}, s{sT0}, s{sJ}")
            A.raw(f"v_mov_b32 {v(t0)}, s{sMYB}"); A.raw(f"v_mov_b32 {v(t1)}, 0"); A.raw("s_mov_b64 exec, 1")
            A.raw(f"buffer_store_byte {v(t0)}, {v(t1)}, {srd(sDBG)}, s{sT0} offen sc1"); A.raw("s_mov_b64 exec, -1")
            g.opt_end(lab)
            g.e(f"v_and_b32 {v(t0)}, 31, {L}"); g.e(f"v_lshl_add_u32 {v(t0)}, s{sTB}, 5, {v(t0)}")
            g.e(f"v_add_u32 {v(t0)}, 16, {v(t0)}"); g.e(f"v_mul_u32_u24 {v(t0)}, 1040, {v(t0)}")
            g.e(f"v_lshrrev_b32 {v(t1)}, 5, {L}"); g.e(f"v_lshl_add_u32 {v(t0)}, {v(t1)}, 3, {v(t0)}")
            g.e(f"s_lshl_b32 s{sT0}, s{sJ}, 1"); g.e(f"s_add_u32 s{sT0}, s{sT0}, s{sNT}"); g.e(f"s_lshl_b32 s{sT0}, s{sT0}, 6")
            g.e(f"v_add_u32 {v(t0)}, s{sT0}, {v(t0)}")
            for i in range(4): g.e(f"ds_read_b64 {v(ACC0 + 2 * i, 2)}, {v(t0)} offset:{16 * i}")
            for i in range(8):
                g.e(f"v_lshlrev_b32 {v(RES + 2 * i)}, 16, {v(ACC0 + i)}"); g.e(f"v_and_b32 {v(RES + 2 * i + 1)}, 0xffff0000, {v(ACC0 + i)}")
        else:
            g.barrier(grp(0))
            lab = g.w0_begin()
            A.raw(f"v_mov_b32 {v(t0)}, 1"); A.raw(f"v_mov_b32 {v(t1)}, {HFLAG}"); A.raw("s_mov_b64 exec, 1")
            A.raw(f"buffer_store_dword {v(t0)}, {v(t1)}, {srd(sWS)}, s{sFLAG} offen sc1"); A.raw("s_mov_b64 exec, -1")
            g.opt_end(lab)
        for r in reads(0): r()
        rd_s(0)
        for s_ in range(16):
            nxt = []
            if s_ + 1 < 16:
                nxt = reads(s_ + 1) + [lambda s_=s_: rd_s(s_ + 1)]
                if (s_ + 1) % GS == 0: nxt = [lambda s_=s_: g.barrier(grp(s_ + 1))] + nxt
            fill = []
            x = XS[s_ & 1]
            for r in range(4):
                fill.append(f"v_dot2_f32_bf16 {v(vS1)}, {v(x + r)}, s{sONES}, {v(vS1)}")
                fill.append(f"v_dot2_f32_bf16 {v(vS2)}, {v(x + r)}, {v(x + r)}, {v(vS2)}")
            if first:
                for mi, m in enumerate('qkv'):
                    for r in range(4): fill.append(f"v_dot2_f32_bf16 {v(vCS + mi)}, {v(wdst(m, s_)[1] + r)}, s{sONES}, {v(vCS + mi)}")
            jobs = [(m, b) for b in blocks for m in 'qkv' if not (m == 'q' and b == 0)]
            for n_, (m, b) in enumerate(jobs):
                k, n = wdst(m, s_)
                cc = "0" if s_ == 0 else v(acc(m, b), 4)
                g.e(f"v_mfma_f32_16x16x32_bf16 {v(acc(m, b), 4)}, {R(k, n, 4)}, {v(XF[s_ & 1] + 4 * b, 4)}, {cc}")
                if n_ >= 1 and nxt: nxt.pop(0)()
                left = len(jobs) - n_
                for _ in range(-(-len(fill) // left) if n_ >= 2 else 0): g.e(fill.pop(0))
                if n_ in (3, 7, 11): g.pump(1)
            while nxt: nxt.pop(0)()
            if first and s_ == g.cfg.get('touch1', 6):
                g.touch(sWO, 16, [f"s_lshl_b32 s{sT0}, s2, 11", f"s_lshl_b32 s{sT1}, s{sJ}, 7", f"s_sub_u32 s{sT0}, s{sT0}, s{sT1}"], 0)
                g.touch(sW1, 16, [f"s_lshl_b32 s{sT0}, s2, 11", f"s_lshl_b32 s{sT1}, s{sJ}, 7", f"s_sub_u32 s{sT0}, s{sT0}, s{sT1}"], 1)
                g.touch(sW2, 16, [f"s_lshl_b32 s{sT0}, s2, 11", f"s_lshl_b32 s{sT1}, s{sJ}, 7", f"s_sub_u32 s{sT0}, s{sT0}, s{sT1}"], 2)
                g.touch(sWS, 64, [f"s_mov_b32 s{sT0}, s{sSTA}"], 3)
            if first and s_ == g.cfg.get('touch2', 10):
                g.touch(sW3, 56, [f"s_mul_i32 s{sT0}, s2, 7168", f"s_mul_i32 s{sT1}, s{sJ}, 448", f"s_sub_u32 s{sT0}, s{sT0}, s{sT1}"], 0)
                g.touch(sW4, 56, [f"s_mul_i32 s{sT0}, s2, 7168", f"s_lshl_b32 s{sT1}, s{sJ}, 7", f"s_sub_u32 s{sT0}, s{sT0}, s{sT1}"], 1)
                g.touch(sWS, 64, [f"s_mov_b32 s{sT0}, s{sSTB}"], 2)
            if not first and s_ == g.cfg.get('halo_at', 11):
                lab = g.opt_begin([f"s_cmp_eq_u32 s{sC}, 0", f"s_cselect_b32 s{sT0}, 1, s{sW}", f"s_cmp_lg_u32 s{sT0}, 0", "s_cbranch_scc1"])
                A.raw(f"v_add_u32 {v(t1)}, {HFLAG - 128}, {v(vFL)}")
                g.poll(f"buffer_load_dword {v(t0)}, {v(t1)}, {srd(sWS)}, 0 offen sc1", [f"v_cmp_ne_u32 vcc, 1, {v(t0)}"])
                g.opt_end(lab)
                g.halo_armed = True
            if not first and s_ == g.cfg.get('halo_at', 11) + 1 + (g.cfg.get('halo_at', 11) & 1):
                g.Q[0:0] = [dict(name=f"halo_{u}", voff=vXD, srd=sWS, sbase=sHXS, goff=u * 4096, aux="sc1", allowed={u}) for u in range(4)]
                g.pump(4)
        g.stamp(f"p1_{layer}_main")
        def finish_stats(tokbase_s):
            g.e(f"v_permlane32_swap_b32 {v(vS1)}, {v(vS2)}")
            g.e(f"v_add_f32 {v(t0)}, {v(vS1)}, {v(vS2)}")
            g.e(f"v_mov_b32 {v(t1)}, {v(t0)}")
            g.e(f"v_permlane16_swap_b32 {v(t0)}, {v(t1)}")
            g.e(f"v_add_f32 {v(t0)}, {v(t0)}, {v(t1)}")
            g.e(f"v_mov_b32 {v(vS1)}, 0"); g.e(f"v_mov_b32 {v(vS2)}, 0")
        def mu_r(addr):
            g.e(f"v_mul_f32 {v(t0)}, {fl(-1.0 / 512)}, {v(t0)}")
            g.e(f"v_mul_f32 {v(t1)}, {fl(1.0 / 512)}, {v(t1)}")
            g.e(f"v_fma_f32 {v(t1)}, -{v(t0)}, {v(t0)}, {v(t1)}")
            g.e(f"v_max_f32 {v(t1)}, 0, {v(t1)}")
            g.e(f"v_add_f32 {v(t1)}, {fl(EPS)}, {v(t1)}")
            g.e(f"v_rsq_f32 {v(t1)}, {v(t1)}")
            g.e(f"ds_write_b32 {v(addr)}, {v(t0)} offset:{NM - MISC}")
            g.e(f"ds_write_b32 {v(addr)}, {v(t1)} offset:{RR - MISC}")
        vA = TMP + 9; vB = TMP + 10
        g.e(f"v_and_b32 {v(vB)}, 15, {L}"); g.e(f"v_lshlrev_b32 {v(vB)}, 2, {v(vB)}"); g.e(f"v_add_u32 {v(vB)}, {MISC}, {v(vB)}")
        g.e(f"s_lshl_b32 s{sT0}, s{sW}, 6"); g.e(f"s_add_u32 s{sT0}, s{sT0}, 64"); g.e(f"v_add_u32 {v(vA)}, s{sT0}, {v(vB)}")
        finish_stats(None)
        g.e(f"v_mov_b32 {v(t1)}, {v(t0)}")
        g.e(f"v_permlane32_swap_b32 {v(t0)}, {v(t1)}")
        mu_r(vA)
        hn = [] if first else [f"halo_{u}" for u in range(4)]
        if not first:
            g.barrier(hn)
            g.e(f"v_and_b32 {v(t0)}, 15, {L}"); g.e(f"v_lshlrev_b32 {v(vXR[1])}, 4, {v(t0)}")
            g.e(f"v_lshrrev_b32 {v(t1)}, 4, {L}"); g.e(f"v_lshl_add_u32 {v(vXR[1])}, {v(t1)}, 8, {v(vXR[1])}")
            g.e(f"s_lshl_b32 s{sT0}, s{sW}, 12"); g.e(f"v_add_u32 {v(vSA)}, s{sT0}, {v(vXR[1])}")
            hs = 1024
        else:
            g.e(f"s_lshl_b32 s{sT0}, s{sW}, 8"); g.e(f"v_add_u32 {v(vSA)}, s{sT0}, {v(vXR[0])}")
            hs = 64
        HB = 64
        for i in range(4): g.e(f"ds_read_b128 {v(HB + 4 * i, 4)}, {v(vSA)} offset:{i * hs}", tag="x0_0" if first else "halo_0")
        fill = []
        for r in range(16):
            fill.append(lambda r=r: g.e(f"v_dot2_f32_bf16 {v(vS1)}, {v(HB + r)}, s{sONES}, {v(vS1)}"))
            fill.append(lambda r=r: g.e(f"v_dot2_f32_bf16 {v(vS2)}, {v(HB + r)}, {v(HB + r)}, {v(vS2)}"))
        if not first:
            def rdh(s_): g.e(f"ds_read_b128 {v(XF[0] + 4 * (s_ % 8), 4)}, {v(vXR[1])} offset:{s_ * 1024}", tag="halo_0")
            for s_ in range(6): rdh(s_)
            for s_ in range(16):
                if s_ + 6 < 16: rdh(s_ + 6)
                for m in 'kv':
                    cc = "0" if s_ == 0 else v(acc(m, 0), 4)
                    g.e(f"v_mfma_f32_16x16x32_bf16 {v(acc(m, 0), 4)}, {a(wdst(m, s_)[1], 4)}, {v(XF[0] + 4 * (s_ % 8), 4)}, {cc}")
                    for _ in range(2):
                        if fill: fill.pop(0)()
                if s_ % 2: g.pump(1)
            for u in hn: g.release(u)
        while fill: fill.pop(0)()
        finish_stats(None)
        g.e(f"v_lshrrev_b32 {v(t1)}, 5, {L}"); g.e(f"v_lshl_add_u32 {v(t1)}, {v(t1)}, 6, {v(vB)}")
        g.e(f"s_lshl_b32 s{sT0}, s{sW}, 7"); g.e(f"v_add_u32 {v(t1)}, s{sT0}, {v(t1)}")
        g.e(f"ds_write_b32 {v(t1)}, {v(t0)} offset:{HS - MISC}")
        if first:
            g.e(f"s_lshl_b32 s{sT2}, s{sW}, 8"); g.e(f"s_add_u32 s{sT2}, s{sT2}, {CSS - MISC}")
            g.e(f"v_add_u32 {v(vSA)}, s{sT2}, {v(vB)}")
            for mi in range(3):
                r = vCS + mi
                g.e(f"v_mov_b32 {v(t0)}, {v(r)}"); g.e(f"v_permlane32_swap_b32 {v(t0)}, {v(r)}"); g.e(f"v_add_f32 {v(t0)}, {v(t0)}, {v(r)}")
                g.e(f"v_mov_b32 {v(t2)}, {v(t0)}"); g.e(f"v_permlane16_swap_b32 {v(t0)}, {v(t2)}"); g.e(f"v_add_f32 {v(t0)}, {v(t0)}, {v(t2)}")
                g.e(f"ds_write_b32 {v(vSA)}, {v(t0)} offset:{64 * mi}")
                g.e(f"v_mov_b32 {v(r)}, 0")
            g.e(f"v_and_b32 {v(t0)}, 48, {L}"); g.e(f"s_add_u32 s{sT2}, s{sT2}, {MISC}"); g.e(f"v_add_u32 {v(t0)}, s{sT2}, {v(t0)}")
            for mi in range(3): g.e(f"ds_read_b128 {a(aCSQ + 4 * mi, 4)}, {v(t0)} offset:{64 * mi}")
            for s_ in range(21): g.release(f"x0_{s_}")
        for u in range(16): g.Q.append(g.uW('o', u, P, allowed=set(range(16, NSLOT))))
        for u in range(16): g.Q.append(g.uW('1', u, P, allowed=set(range(16, NSLOT))))
        g.barrier(lds_all=True)
        g.stamp(f"p1_{layer}_halo")
        g.pump(4)
        NMB = HB
        g.e(f"v_add_u32 {v(vSA)}, {HS - MISC}, {v(vB)}")
        for i in range(4): g.e(f"ds_read2_b32 {v(HB + 8 + 2 * i, 2)}, {v(vSA)} offset0:{32 * i} offset1:{32 * i + 16}")
        for b in range(1, 5): g.e(f"ds_read_b32 {v(NMB + b)}, {v(vB)} offset:{NM - MISC + 64 * b}")
        CS = WB
        for r in range(12): g.e(f"v_accvgpr_read_b32 {v(CS + r)}, {a(aCSQ + r)}")
        g.e(f"v_pk_add_f32 {v(HB + 8, 2)}, {v(HB + 8, 2)}, {v(HB + 10, 2)}")
        g.e(f"v_pk_add_f32 {v(HB + 12, 2)}, {v(HB + 12, 2)}, {v(HB + 14, 2)}")
        g.e(f"v_add_f32 {v(t0)}, {v(HB + 8)}, {v(HB + 12)}")
        g.e(f"v_add_f32 {v(t1)}, {v(HB + 9)}, {v(HB + 13)}")
        mu_r(vB)
        g.e(f"v_mov_b32 {v(NMB)}, {v(t0)}")
        SCR = 4 * 4096; QO, KO, VO = 0, 2048, 4608
        vQ, vV = vA, vSA
        g.e(f"s_mul_i32 s{sT0}, s{sW}, 10240"); g.e(f"s_add_u32 s{sT0}, s{sT0}, {SCR}")
        g.e(f"v_and_b32 {v(t0)}, 15, {L}"); g.e(f"v_lshlrev_b32 {v(t0)}, 4, {v(t0)}"); g.e(f"v_add_u32 {v(t0)}, s{sT0}, {v(t0)}")
        g.e(f"v_lshrrev_b32 {v(t1)}, 4, {L}"); g.e(f"v_mul_u32_u24 {v(vV)}, 1280, {v(t1)}"); g.e(f"v_add_u32 {v(vV)}, {v(vV)}, {v(t0)}")
        g.e(f"v_bfe_u32 {v(t1)}, {L}, 4, 1"); g.e(f"v_lshl_add_u32 {v(t0)}, {v(t1)}, 3, {v(t0)}")
        g.e(f"v_lshrrev_b32 {v(t1)}, 5, {L}")
        vK = vXR[2]
        g.e(f"v_mul_u32_u24 {v(vK)}, 1280, {v(t1)}"); g.e(f"v_add_u32 {v(vK)}, {v(vK)}, {v(t0)}")
        g.e(f"v_lshl_add_u32 {v(vQ)}, {v(t1)}, 10, {v(t0)}")
        def fix(m, b):
            r = acc(m, b); cs = CS + 4 * 'qkv'.index(m); o, bit = g.bc(NMB + b)
            for h in (0, 2):
                g.e(f"v_pk_fma_f32 {v(r + h, 2)}, {v(cs + h, 2)}, {o}, {v(r + h, 2)} op_sel:[0,{bit},0] op_sel_hi:[1,{bit},1]")
            if m != 'v':
                g.e(f"v_cvt_pk_bf16_f32 {v(r)}, {v(r)}, {v(r + 1)}"); g.e(f"v_cvt_pk_bf16_f32 {v(r + 1)}, {v(r + 2)}, {v(r + 3)}")
            if m == 'q': g.e(f"ds_write_b64 {v(vQ)}, {v(r, 2)} offset:{QO + (b - 1) * 256}")
            if m == 'k': g.e(f"ds_write_b64 {v(vK)}, {v(r, 2)} offset:{KO + b * 256}")
            if m == 'v': g.e(f"ds_write_b128 {v(vV)}, {v(r, 4)} offset:{VO + b * 256}")
        for m, bs in (('q', (1, 2, 3, 4)), ('k', (1, 2, 3, 4, 0))):
            for b in bs: fix(m, b)
            g.pump(2)
        vR = vB; vL = vQ
        g.e(f"v_lshlrev_b32 {v(vL)}, 4, {L}"); g.e(f"v_add_u32 {v(vL)}, s{sT0}, {v(vL)}")
        g.e(f"v_lshlrev_b32 {v(vR)}, 2, {L}"); g.e(f"v_add_u32 {v(vR)}, {RR}, {v(vR)}")
        QR, KR, RW, SL, OA = 48, 184, 56, 96, 104
        for h in (0, 1): g.e(f"ds_read_b128 {v(QR + 4 * h, 4)}, {v(vL)} offset:{QO + 1024 * h}")
        for w_ in range(8):
            for h in (0, 1): g.e(f"ds_read_b128 {v(KR + 8 * w_ + 4 * h, 4)}, {v(vL)} offset:{KO + 1280 * h + (16 - 2 * w_) * 16}")
            if w_ == 5:
                for b in (1, 2, 3, 4, 0): fix('v', b)
        for p in range(4): g.e(f"ds_read2_b32 {v(RW + 2 * p, 2)}, {v(vR)} offset0:{16 - 4 * p} offset1:{14 - 4 * p}")
        VR = [128, 144, 160, 64]
        def rdv(w_):
            for q in range(4): g.e(f"ds_read_b128 {v(VR[w_ % 4] + 4 * q, 4)}, {v(vL)} offset:{VO + 1280 * q + (16 - 2 * w_) * 16}")
        for w_ in range(0, 8, 2):
            for r in range(8):
                for ww in (w_, w_ + 1):
                    cc = "0" if r == 0 else v(SL + ww)
                    g.e(f"v_dot2_f32_bf16 {v(SL + ww)}, {v(QR + r)}, {v(KR + 8 * ww + r)}, {cc}")
            if w_ < 6: rdv(w_ // 2)
            g.pump(1)
        for p in range(4): g.e(f"v_pk_mul_f32 {v(SL + 2 * p, 2)}, {v(SL + 2 * p, 2)}, {v(RW + 2 * p, 2)}")
        lab = g.opt_begin([f"s_cmp_lg_u32 s{sC}, 0", "s_cbranch_scc1"])
        A.raw(f"v_mov_b32 {v(t0)}, {fl(-1e30)}")
        for w_ in range(1, 8):
            A.raw(f"s_mov_b64 s[{sM0}:{sM1}], {(1 << (2 * w_)) - 1}")
            A.raw(f"v_cndmask_b32 {v(SL + w_)}, {v(SL + w_)}, {v(t0)}, s[{sM0}:{sM1}]")
        g.opt_end(lab)
        g.e(f"v_max3_f32 {v(t0)}, {v(SL)}, {v(SL + 1)}, {v(SL + 2)}")
        g.e(f"v_max3_f32 {v(t1)}, {v(SL + 3)}, {v(SL + 4)}, {v(SL + 5)}")
        g.e(f"v_max3_f32 {v(t0)}, {v(t0)}, {v(SL + 6)}, {v(SL + 7)}")
        cq, nmx = TMP + 12, TMP + 13
        g.e(f"v_mul_f32 {v(cq)}, {fl(0.25 * math.log2(math.e))}, {v(RW)}")
        g.e(f"v_max_f32 {v(t0)}, {v(t0)}, {v(t1)}")
        g.e(f"v_mul_f32 {v(nmx)}, -{v(t0)}, {v(cq)}")
        for p in range(4):
            g.e(f"v_pk_fma_f32 {v(SL + 2 * p, 2)}, {v(SL + 2 * p, 2)}, {v(cq, 2)}, {v(cq, 2)} op_sel:[0,0,1] op_sel_hi:[1,0,1]")
        for w_ in range(8): g.e(f"v_exp_f32 {v(SL + w_)}, {v(SL + w_)}")
        g.pump(1)
        g.e(f"v_pk_add_f32 {v(cq, 2)}, {v(SL, 2)}, {v(SL + 2, 2)}")
        g.e(f"v_pk_add_f32 {v(cq + 2, 2)}, {v(SL + 4, 2)}, {v(SL + 6, 2)}")
        g.e(f"v_pk_add_f32 {v(cq, 2)}, {v(cq, 2)}, {v(cq + 2, 2)}")
        g.e(f"v_add_f32 {v(cq)}, {v(cq)}, {v(cq + 1)}")
        g.e(f"v_rcp_f32 {v(cq)}, {v(cq)}")
        for p in range(4): g.e(f"v_pk_mul_f32 {v(SL + 2 * p, 2)}, {v(SL + 2 * p, 2)}, {v(RW + 2 * p, 2)}")
        for p in range(4): g.e(f"v_pk_mul_f32 {v(SL + 2 * p, 2)}, {v(SL + 2 * p, 2)}, {v(cq, 2)} op_sel_hi:[1,0]")
        for w_ in range(8):
            if w_ + 3 < 8: rdv(w_ + 3)
            o, bit = g.bc(SL + w_)
            for q in range(8):
                if w_ == 0: g.e(f"v_pk_mul_f32 {v(OA + 2 * q, 2)}, {v(VR[w_ % 4] + 2 * q, 2)}, {o} op_sel:[0,{bit}] op_sel_hi:[1,{bit}]")
                else: g.e(f"v_pk_fma_f32 {v(OA + 2 * q, 2)}, {v(VR[w_ % 4] + 2 * q, 2)}, {o}, {v(OA + 2 * q, 2)} op_sel:[0,{bit},0] op_sel_hi:[1,{bit},1]")
            if w_ % 2 and w_ < 6: g.pump(1)
        g.pack16(OA, QR)
        g.e(f"buffer_store_dwordx4 {v(QR, 4)}, {v(vSTO)}, {srd(sWS)}, s{sSTA} offen", tag="st")
        g.e(f"buffer_store_dwordx4 {v(QR + 4, 4)}, {v(vSTO)}, {srd(sWS)}, s{sSTA} offen offset:1024", tag="st")
        g.stamp(f"p1_{layer}_attn")
        def mid():
            g.setup_wr(32, False); g.setup_xr32()
        return g.handoff(6 * layer + 1, ["st"], g.cfg['winB'], g.cfg['winC'], mid)

    def small(g, layer, which):
        A = g.A; P = 'ab'[layer]; t0, t1, t2 = vT
        mat = {2: 'o', 3: '1', 4: '2'}[which]; xb = {2: sRA, 3: sRB, 4: sRA}[which]
        g.c(f"===== P{which} layer {layer} =====")
        XP = f"{P}{which}"
        if which == 4:
            assert all(s_ in g.free for s_ in range(17)), g.free
            for s_ in range(17): g.free.remove(s_); g.slot[f"{XP}pad_{s_}"] = s_
            xs = []
            for u in range(16):
                d = g.uX(xb, u, XP, lds=u * 4 * 1088 + 32); d['pad'] = 1; xs.append(d)
        else:
            xs = [g.uX(xb, u, XP, allowed={u}) for u in range(16)]
        g.Q[0:0] = xs
        nx = {2: [('2', 16)], 3: [('3a', 16)], 4: [('3b', 16), ('3c', 16), ('3d', 8)]}[which]
        lo = 17 if which in (2, 3) else 0
        for m, n in nx:
            for u in range(n): g.Q.append(g.uW(m, u, P, allowed=set(range(17, NSLOT)) if m in ('2', '3a', '3b') else None))
        g.pump(8)
        dsh = [1, -1, 2, -2]
        steps = []
        for s_ in range(32):
            wu = f"{P}W{mat}_{s_ // 2}"; xu = f"{XP}X_{s_ // 2}"
            st = dict(w=(vWR, lambda wu=wu, s_=s_: g.slot[wu] * 4096 + (s_ & 1) * 2048), wu=wu, xu=xu, rel=[])
            if which == 4: st['x'] = ('lds', lambda s_=s_: s_ * 2176 + 32 - 16 * dsh[s_ // 8], None); st['xu'] = f"{XP}pad_0"
            else: st['x'] = ('lds', lambda xu=xu, s_=s_: g.slot[xu] * 4096 + (s_ & 1) * 2048, None)
            if s_ & 1:
                st['rel'].append(wu)
                if which != 4: st['rel'].append(xu)
            if which == 4 and s_ == 31: st['rel'] += [f"{XP}pad_{k}" for k in range(17)]
            steps.append(st)
        gs = [0, 8, 16, 24, 28]
        groups = {}
        for n_, s0 in enumerate(gs):
            s1 = gs[n_ + 1] if n_ + 1 < len(gs) else 32
            groups[s0] = [f"{P}W{mat}_{u}" for u in range(s0 // 2, s1 // 2)] + [f"{XP}X_{u}" for u in range(s0 // 2, s1 // 2)]
        budget = [8 + g.cfg['winA']]
        xleft = [8]
        def pumps(i):
            if i % 2 == 0 or budget[0] <= 0: return 0
            budget[0] -= 1; return 1
        pre_bar = None
        if which == 4:
            def pre_bar(k):
                if k != 0: return
                H = TMP
                lp = A.newlabel('HP'); dn = A.newlabel('HD')
                g.e(f"s_mov_b32 s{sT0}, {layer * 0x10000}")
                g.gid += 1; A.begin_var(g.gid, 0)
                A.raw(f"s_mov_b32 s{sCNT}, s{sTO}")
                A.label(lp)
                A.raw(f"buffer_load_dwordx4 {v(H, 4)}, {v(vHHLD)}, {srd(sWS)}, s{sT0} offen sc1")
                A.raw(f"s_add_u32 s{sCNT}, s{sCNT}, 1"); A.raw(f"s_cmp_gt_u32 s{sCNT}, {g.cfg['maxpoll']}")
                A.raw("s_waitcnt vmcnt(0)"); A.raw(f"s_cbranch_scc1 {dn}")
                A.raw(f"v_max_u32 {v(t0)}, {v(H)}, {v(H + 1)}"); A.raw(f"v_max3_u32 {v(t0)}, {v(t0)}, {v(H + 2)}, {v(H + 3)}")
                A.raw(f"v_cmp_eq_u32 vcc, -1, {v(t0)}"); A.raw(f"s_cbranch_vccnz {lp}")
                A.raw(f"s_mov_b32 s{sCNT}, 0")
                A.label(dn); A.raw(f"s_mov_b32 s{sTO}, s{sCNT}")
                A.end_var()
                g.e(f"s_cmp_eq_u32 s{sTB}, 1"); g.e(f"s_cselect_b32 exec_lo, -1, 0xffff"); g.e("s_mov_b32 exec_hi, 0")
                g.e(f"ds_write_b128 {v(vHHW)}, {v(H, 4)}")
                g.e("s_mov_b64 exec, -1")
                A.wait_lg_all()
        acc = {2: RES, 3: ACC0, 4: ACC1}[which]
        post = None
        if which == 3:
            def post(i, st):
                g.stats_post(st)
                if layer == 0: g.cs_post(st, vCS)
        g.gemm32(steps, groups, acc, which == 3, post=post, pumps=pumps, pre_bar=pre_bar)
        g.stamp(f"p{which}_{layer}_mm")
        PK = XB
        if which == 3:
            if layer == 0:
                for f in g.cs32_finish(vCS, aCS1): f()
            g.stats32_finish(True)
            for f in g.gelu_ops(ACC0, 16, aCS1, PK): f()
            for r in range(8): g.e(f"v_min_u32 {v(PK + r)}, -2, {v(PK + r)}")
        else: g.pack16(acc, PK)
        g.store_x(PK, {2: sSTB, 3: sSTA, 4: sSTB}[which], "st")
        if which == 3:
            g.e(f"s_add_u32 s{sT0}, s{sHHS}, {layer * 0x10000}")
            g.e(f"buffer_store_dwordx4 {v(PK, 4)}, {v(vHHST)}, {srd(sWS)}, s{sT0} offen sc1", tag="hh")
            g.e(f"buffer_store_dwordx4 {v(PK + 4, 4)}, {v(vHHST)}, {srd(sWS)}, s{sT0} offen offset:32 sc1", tag="hh")
        g.stamp(f"p{which}_{layer}_epi")
        def mid():
            if which == 2:
                g.setup_wr(32, True)
                for k in range(3):
                    g.touch(sWS, 64 if k < 2 else 32, [f"s_mul_i32 s{sT0}, s{sJ}, 20480", f"s_add_u32 s{sT0}, s{sT0}, {65536 + 8192 * k}", f"s_add_u32 s{sT0}, s{sT0}, s{sRA}"], k + 1)
            if which == 3:
                T = TMP + 10; r, nmr = T + 4, T + 5
                for q in range(8):
                    g.e(f"v_pk_fma_f32 {v(ACC1 + 2 * q, 2)}, {v(RES + 2 * q, 2)}, {v(r, 2)}, {v(r, 2)} op_sel:[0,0,1] op_sel_hi:[1,0,1]")
                g.setup_xr32(1088)
            if which == 4:
                for q in range(8): g.e(f"v_pk_add_f32 {v(RES + 2 * q, 2)}, {v(RES + 2 * q, 2)}, {v(ACC1 + 2 * q, 2)}")
                g.setup_xr32()
        return g.handoff(6 * layer + which, ["st"], g.cfg['winB'], g.cfg['winC'], mid)

    def p5(g, layer):
        A = g.A; P = 'ab'[layer]; t0, t1, t2 = vT; L = v(vLANE)
        g.c(f"===== P5 layer {layer}: LN + W3 + gelu =====")
        XP = f"{P}5"
        g.Q[0:0] = [g.uX(sRB, u, XP, allowed={u}) for u in range(16)]
        n4 = g.cfg.get('w4pre', 26)
        for u in range(n4): g.Q.append(g.uW('4', u, P))
        g.pump(8)
        PK = XB
        fill = []
        for ci, ch in enumerate('abc'):
            acc = (ACC0, ACC1)[ci & 1]
            steps = []; groups = {}
            for s_ in range(32):
                wu = f"{P}W3{ch}_{s_ // 2}"; xu = f"{XP}X_{s_ // 2}"
                st = dict(w=(vWR, lambda wu=wu, s_=s_: g.slot[wu] * 4096 + (s_ & 1) * 2048), wu=wu, xu=xu, rel=[])
                if ci == 0: st['x'] = ('lds', lambda xu=xu, s_=s_: g.slot[xu] * 4096 + (s_ & 1) * 2048, BIG + 4 * s_)
                else: st['x'] = ('reg', BIG + 4 * s_)
                if s_ & 1:
                    st['rel'].append(wu)
                    if ci == 0: st['rel'].append(xu)
                steps.append(st)
            for s0 in range(0, 32, 8):
                groups[s0] = [f"{P}W3{ch}_{u}" for u in range(s0 // 2, s0 // 2 + 4)] + ([f"{XP}X_{u}" for u in range(s0 // 2, s0 // 2 + 4)] if ci == 0 else [])
            def post(i, st, ci=ci):
                if ci == 0: g.stats_post(st)
                if layer == 0: g.cs_post(st, vCS + (ci & 1))
            g.gemm32(steps, groups, acc, True, post=post, fill=fill, nfill=-(-len(fill) // 30), pumps=lambda i: i & 1)
            while fill: fill.pop(0)()
            g.stamp(f"p5_{layer}_{ch}")
            if ci == 0: g.stats32_finish(False)
            fill = []
            if layer == 0: fill += g.cs32_finish(vCS + (ci & 1), aCS3 + 16 * ci)
            fill += g.gelu_ops(acc, 16, aCS3 + 16 * ci, PK)
            fill.append(lambda ci=ci: g.e(f"s_add_u32 s{sT3}, s{sH2F}, {ci * 8192}"))
            fill.append(lambda: g.store_x(PK, sT3, "st"))
        hreg = [[XB + 8, XB + 9, XB + 10], [XB + 11, XB + 12, XB + 13]]
        for e_ in (0, 1):
            d = hreg[e_][0]
            g.e(f"v_lshrrev_b32 {v(t0)}, 5, {L}"); g.e(f"v_bfe_u32 {v(t1)}, {L}, 2, 2")
            g.e(f"v_lshl_add_u32 {v(d)}, {v(t0)}, 2, {v(t1)}")
            if e_: g.e(f"v_add_u32 {v(d)}, 8, {v(d)}")
            g.e(f"v_lshlrev_b32 {v(d)}, 6, {v(d)}")
            g.e(f"v_bfe_u32 {v(t0)}, {L}, 4, 1"); g.e(f"v_lshl_add_u32 {v(d)}, {v(t0)}, 5, {v(d)}")
            g.e(f"v_and_b32 {v(t0)}, 3, {L}"); g.e(f"v_lshl_add_u32 {v(d)}, {v(t0)}, 3, {v(d)}")
            g.windows(hreg[e_])
        ex = [g.alloc("ex0_" + P), g.alloc("ex1_" + P)]
        assert None not in ex
        acc = ACC1
        g.barrier([f"{P}W3d_{u}" for u in range(8)])
        g.A.wait_lg_all()
        fl_all = fill
        save = None
        l1 = A.newlabel('NT1'); l2 = A.newlabel('NTE')
        vE = XB + 14
        g.e(f"s_mul_i32 s{sT0}, s{sTB}, {(ex[1] - ex[0]) * 4096}"); g.e(f"s_add_u32 s{sT0}, s{sT0}, {ex[0] * 4096}")
        g.e(f"v_lshlrev_b32 {v(vE)}, 4, {L}"); g.e(f"v_add_u32 {v(vE)}, s{sT0}, {v(vE)}")
        import copy
        g.e(f"s_cmp_lg_u32 s{sNT}, 0"); g.e(f"s_cbranch_scc1 {l1}")
        g.gid += 1
        st0 = (copy.deepcopy(A.vm), copy.deepcopy(A.lg), list(g.Q), set(g.free), dict(g.slot), list(g.pend_free), set(g.visible))
        ends = []
        for nt in (0, 1):
            A.vm, A.lg = copy.deepcopy(st0[0]), copy.deepcopy(st0[1])
            g.Q, g.free, g.slot, g.pend_free, g.visible = list(st0[2]), set(st0[3]), dict(st0[4]), list(st0[5]), set(st0[6])
            if nt: A.label(l1)
            A.begin_var(g.gid, nt, opt=False)
            steps = []
            for i in range(16):
                s_ = 16 * nt + i; wu = f"{P}W3d_{s_ // 4}"
                steps.append(dict(w=(hreg, lambda wu=wu, s_=s_: g.slot[wu] * 4096 + (s_ & 3) * 1024), wu=wu, x=('reg', BIG + 4 * s_), rel=[]))
            f2 = list(fl_all)
            post = (lambda i, st: g.cs_post(st, vCS + 1)) if layer == 0 else None
            g.gemm32(steps, {}, acc, True, post=post, fill=f2, nfill=-(-len(f2) // 16), pumps=lambda i: i & 1)
            while f2: f2.pop(0)()
            snd = acc + 8 * (1 - nt)
            g.e(f"ds_write_b128 {v(vE)}, {v(snd, 4)} offset:{2048 * nt}")
            g.e(f"ds_write_b128 {v(vE)}, {v(snd + 4, 4)} offset:{2048 * nt + 1024}")
            if nt:
                for r in range(8): g.e(f"v_mov_b32 {v(acc + r)}, {v(acc + 8 + r)}")
            if layer == 0:
                g.e(f"v_lshlrev_b32 {v(t0)}, 2, v0"); g.e(f"v_add_u32 {v(t0)}, {MISC}, {v(t0)}")
                g.e(f"ds_write_b32 {v(t0)}, {v(vCS + 1)}")
            A.wait_lg_all()
            if nt == 0: g.e(f"s_branch {l2}")
            A.end_var()
            ends.append(([o['tag'] for o in A.vm], [u['name'] for u in g.Q]))
        assert ends[0] == ends[1]
        A.label(l2)
        for u in range(8): g.release(f"{P}W3d_{u}")
        g.barrier()
        g.stamp(f"p5_{layer}_d")
        g.e(f"s_xor_b32 s{sT0}, s{sNT}, 1"); g.e(f"s_lshl_b32 s{sT0}, s{sT0}, 11"); g.e(f"v_add_u32 {v(vE)}, s{sT0}, {v(vE)}")
        g.e(f"ds_read_b128 {v(acc + 8, 4)}, {v(vE)}", tag="ex0_" + P); g.e(f"ds_read_b128 {v(acc + 12, 4)}, {v(vE)} offset:1024", tag="ex0_" + P)
        g.release("ex0_" + P); g.release("ex1_" + P)
        if layer == 0:
            g.e(f"v_xor_b32 {v(t0)}, 64, v0"); g.e(f"v_lshlrev_b32 {v(t0)}, 2, {v(t0)}"); g.e(f"v_add_u32 {v(t0)}, {MISC}, {v(t0)}")
            g.e(f"ds_read_b32 {v(t2)}, {v(t0)}")
            g.e(f"v_add_f32 {v(vCS + 1)}, {v(vCS + 1)}, {v(t2)}")
            ops = g.cs32_finish(vCS + 1, aCS3 + 48, regs_sel=(0, 1))
            for n_, f in enumerate(ops):
                f()
                if n_ == 11:
                    g.e(f"s_lshl_b32 s{sT0}, s{sNT}, 6"); g.e(f"v_add_u32 {v(t1)}, s{sT0}, {v(t1)}")
        for q in range(4): g.e(f"v_pk_add_f32 {v(acc + 2 * q, 2)}, {v(acc + 2 * q, 2)}, {v(acc + 8 + 2 * q, 2)}")
        for f in g.gelu_ops(acc, 8, aCS3 + 48, PK): f()
        g.e(f"s_lshl_b32 s{sT0}, s{sNT}, 11"); g.e(f"s_sub_u32 s{sT3}, s{sH2H}, s{sT0}")
        g.e(f"buffer_store_dwordx4 {v(PK, 4)}, {v(vST)}, {srd(sWS)}, s{sT3} offen", tag="st")
        g.stamp(f"p5_{layer}_epi")
        return g.handoff(6 * layer + 5, ["st"], g.cfg['winB'], g.cfg['winC'])

    def p6(g, layer):
        A = g.A; P = 'ab'[layer]; t0, t1, t2 = vT; L = v(vLANE)
        g.c(f"===== P6 layer {layer}: h2 @ W4 =====")
        XP = f"{P}6"
        pend = {u['name']: u for u in g.Q}
        q = []
        n4 = g.cfg.get('w4pre', 26)
        for u in range(56):
            q.append(g.uX(sRA, u, XP))
            nm = f"{P}W4_{u}"
            if nm in pend: q.append(pend[nm])
            elif u >= n4: q.append(g.uW('4', u, P))
        g.Q = q
        if layer == 0:
            for s_ in range(16):
                for m in 'qkv': g.Q.append(g.uW(m, s_, 'b', allowed=set(range(16, NSLOT))))
        g.pump(8)
        steps = []; groups = {}
        for s_ in range(112):
            wu = f"{P}W4_{s_ // 2}"; xu = f"{XP}X_{s_ // 2}"
            steps.append(dict(w=(vWR, lambda wu=wu, s_=s_: g.slot[wu] * 4096 + (s_ & 1) * 2048), wu=wu, xu=xu,
                              x=('lds', lambda xu=xu, s_=s_: g.slot[xu] * 4096 + (s_ & 1) * 2048, None), rel=[wu, xu] if s_ & 1 else []))
        gs = list(range(0, 104, 8)) + [104, 108]
        for n_, s0 in enumerate(gs):
            s1 = gs[n_ + 1] if n_ + 1 < len(gs) else 112
            groups[s0] = [f"{P}W4_{u}" for u in range(s0 // 2, s1 // 2)] + [f"{XP}X_{u}" for u in range(s0 // 2, s1 // 2)]
        nq = [g.cfg.get('qkvA', 6)]
        def pumps(i):
            if g.Q and g.Q[0]['name'].startswith('bWq') or g.Q and g.Q[0]['name'].startswith('bWk') or g.Q and g.Q[0]['name'].startswith('bWv'):
                if nq[0] <= 0 or i % 2 == 0: return 0
                nq[0] -= 1
            return 1
        g.gemm32(steps, groups, RES, False, pumps=pumps)
        g.stamp(f"p6_{layer}_mm")
        PK = XB
        g.pack16(RES, PK)
        if layer == 1:
            for p in (0, 4):
                g.e(f"v_permlane32_swap_b32 {v(PK + p)}, {v(PK + p + 2)}"); g.e(f"v_permlane32_swap_b32 {v(PK + p + 1)}, {v(PK + p + 3)}")
            g.e(f"v_and_b32 {v(t0)}, 31, {L}"); g.e(f"v_lshl_add_u32 {v(t0)}, s{sTB}, 5, {v(t0)}"); g.e(f"v_lshlrev_b32 {v(t0)}, 10, {v(t0)}")
            g.e(f"v_lshrrev_b32 {v(t1)}, 5, {L}"); g.e(f"v_lshl_add_u32 {v(t0)}, {v(t1)}, 4, {v(t0)}")
            g.e(f"s_lshl_b32 s{sT0}, s{sC}, 16"); g.e(f"s_lshl_b32 s{sT1}, s{sJ}, 7"); g.e(f"s_add_u32 s{sT0}, s{sT0}, s{sT1}")
            g.e(f"s_lshl_b32 s{sT1}, s{sNT}, 6"); g.e(f"s_add_u32 s{sT0}, s{sT0}, s{sT1}")
            g.e(f"buffer_store_dwordx4 {v(PK, 4)}, {v(t0)}, {srd(sOUT)}, s{sT0} offen")
            g.e(f"buffer_store_dwordx4 {v(PK + 4, 4)}, {v(t0)}, {srd(sOUT)}, s{sT0} offen offset:32")
            return g.finish()
        g.store_x(PK, sSTB, "st")
        g.e(f"buffer_store_dwordx4 {v(PK, 4)}, {v(vHXST)}, {srd(sWS)}, 0 offen sc1", tag="hx")
        g.e(f"buffer_store_dwordx4 {v(PK + 4, 4)}, {v(vHXST)}, {srd(sWS)}, 0 offen offset:512 sc1", tag="hx")
        g.stamp(f"p6_{layer}_epi")
        def mid():
            g.setup_wr(16, True)
            g.e(f"v_and_b32 {v(t0)}, 15, {L}"); g.e(f"v_lshlrev_b32 {v(vXR[0])}, 4, {v(t0)}")
            g.e(f"v_lshrrev_b32 {v(t1)}, 4, {L}"); g.e(f"v_lshl_add_u32 {v(vXR[0])}, {v(t1)}, 10, {v(vXR[0])}")
        if g.handoff(6, ["st"], g.cfg['winB'], g.cfg['winC'], mid): return True
        pend = {u['name']: u for u in g.Q}; q = []
        lead = g.cfg.get('xlead', 4)
        xs = [g.uX(sRB, u, 'b1', allowed={u}) for u in range(16)]
        for s_ in range(16 + lead):
            if s_ < 16: q.append(xs[s_])
            if s_ >= lead:
                for m in 'qkv':
                    if f"bW{m}_{s_ - lead}" in pend: q.append(pend[f"bW{m}_{s_ - lead}"])
        g.Q = q
        g.pump(6)
        return False

    def build(g):
        g.done = False
        g.prologue()
        t0, t1, _ = vT; L = v(vLANE)
        g.setup_wr(16, False)
        g.e(f"v_and_b32 {v(t0)}, 15, {L}"); g.e(f"v_mul_u32_u24 {v(vXR[0])}, 1040, {v(t0)}")
        g.e(f"v_lshrrev_b32 {v(t1)}, 4, {L}"); g.e(f"v_lshl_add_u32 {v(vXR[0])}, {v(t1)}, 4, {v(vXR[0])}")
        g.e(f"v_add_u32 {v(vXR[1])}, 33280, {v(vXR[0])}")
        for layer in (0, 1):
            for f in (lambda: g.p1(layer), lambda: g.small(layer, 2), lambda: g.small(layer, 3), lambda: g.small(layer, 4), lambda: g.p5(layer), lambda: g.p6(layer)):
                if f(): break
            if g.done: break
        n = g.A.fix_hazards()
        body = g.A.text()
        hdr = open(os.path.join(os.path.dirname(__file__), "header.txt")).read()
        out = hdr + f"""; @launch grid=(256,1,1) block=(256,1,1) lds={LDS_BYTES}
.amdgcn_target "amdgcn-amd-amdhsa--gfx950"
.text
.globl {NAME}_kernel
.p2align 8
.type {NAME}_kernel,@function
{NAME}_kernel:
.set CODE_BYTES, L_END - {NAME}_kernel - 1024
""" + body + f"""L_END:
  s_endpgm
.section .rodata,"a"
.p2align 6
.amdhsa_kernel {NAME}_kernel
  .amdhsa_next_free_vgpr 512
  .amdhsa_next_free_sgpr 96
  .amdhsa_accum_offset 256
  .amdhsa_group_segment_fixed_size 0
  .amdhsa_kernarg_size 88
  .amdhsa_user_sgpr_count 2
  .amdhsa_user_sgpr_kernarg_segment_ptr 1
  .amdhsa_system_sgpr_workgroup_id_x 1
.end_amdhsa_kernel
"""
        return out


if __name__ == "__main__":
    import argparse, json
    ap = argparse.ArgumentParser()
    ap.add_argument("-o", default=f"cdna_kernels/{NAME}.s")
    ap.add_argument("--stop", type=int); ap.add_argument("--prof", action="store_true")
    ap.add_argument("--cfg", default="{}")
    x = ap.parse_args()
    g = Gen(stop=x.stop, prof=x.prof, cfg=json.loads(x.cfg))
    s = g.build(); open(x.o, "w").write(s)
    if x.prof: open(x.o[:-2] + ".stamps", "w").write("\n".join(g.stamps))
    print("wrote", x.o, len(s), "bytes,", len(g.A.L), "lines")
```

```python
import re
REG = re.compile(r'^(-?)(abs\()?([vas])(\d+|\[(\d+):(\d+)\])\)?$')
def regs_of(tok):
    tok = tok.strip()
    if tok in ('vcc',): return [('s','vcc_lo'),('s','vcc_hi')]
    if tok in ('vcc_lo','vcc_hi','m0','exec_lo','exec_hi'): return [('s',tok)]
    if tok == 'exec': return [('s','exec_lo'),('s','exec_hi')]
    m = REG.match(tok)
    if not m: return []
    k = m.group(3)
    if m.group(5) is not None: return [(k,i) for i in range(int(m.group(5)), int(m.group(6))+1)]
    return [(k,int(m.group(4)))]
TRANS = ('v_exp_f32','v_log_f32','v_rcp_f32','v_rsq_f32','v_sqrt_f32','v_sin_f32','v_cos_f32')
class I:
    __slots__=('text','op','defs','uses','kind','meta','cregs')
    def __init__(s, text, meta=None):
        s.text=text; s.meta=meta or {}; s.cregs=[]
        t=text.split(';')[0].strip()
        s.defs=[]; s.uses=[]
        if t.endswith(':') or t=='' or t.startswith('.'):
            s.op=''; s.kind='label' if t.endswith(':') else 'none'; return
        p=t.split(None,1); op=p[0]; s.op=op
        rest=p[1] if len(p)>1 else ''
        ops=[]; cur=''; d=0
        for ch in rest:
            if ch in '[(' : d+=1
            if ch in '])' : d-=1
            if ch==',' and d==0: ops.append(cur); cur=''
            else: cur+=ch
        if cur.strip(): ops.append(cur)
        mods=''
        if ops:
            l=ops[-1].strip().split(None,1); ops[-1]=l[0]; mods=l[1] if len(l)>1 else ''
        R=[regs_of(o) for o in ops]
        fl=lambda L:[x for y in L for x in y]
        if op.startswith('v_mfma'):
            s.kind='mfma'; s.defs=R[0]; s.uses=fl(R[1:]); s.cregs=R[3]
        elif op.startswith('v_permlane') :
            s.kind='valu'; s.defs=fl(R[:2]); s.uses=fl(R[:2])
        elif op.startswith('v_'):
            s.kind='valu'; s.defs=R[0]; s.uses=fl(R[1:])
            if op.startswith(('v_fmac','v_dot2c','v_writelane')) or 'dpp' in op or 'row_' in mods: s.uses+=R[0]
            if op.startswith('v_cndmask') and len(ops)==3: s.uses+=regs_of('vcc')
        elif op.startswith('ds_read') or op.startswith('ds_bpermute'):
            s.kind='ds'; s.defs=R[0]; s.uses=fl(R[1:])
        elif op.startswith('ds_'):
            s.kind='ds'; s.uses=fl(R)
        elif op.startswith(('buffer_load','global_load')):
            s.kind='vm'
            if re.search(r'\blds\b', mods): s.uses=fl(R)+[('s','m0')]; s.meta['dma']=1
            else: s.defs=R[0]; s.uses=fl(R[1:])
        elif op.startswith(('buffer_store','global_store')):
            s.kind='vm'; s.uses=fl(R); s.meta['store']=R[0] if op.startswith('buffer') else R[1]
        elif op.startswith(('buffer_inv','buffer_wbl2')):
            s.kind='vm'
        elif op.startswith(('s_load','s_memtime','s_memrealtime')):
            s.kind='smem'; s.defs=R[0]; s.uses=fl(R[1:])
        elif op.startswith(('s_cmp','s_waitcnt','s_barrier','s_branch','s_cbranch','s_nop','s_endpgm','s_sleep','s_setprio','s_bitcmp')):
            s.kind='salu'; s.uses=fl(R)
        elif op.startswith('s_'):
            s.kind='salu'; s.defs=R[0]; s.uses=fl(R[1:])
        else: raise ValueError(text)
    def states(s):
        if s.kind in ('label','none'): return 0
        if s.op=='s_nop': return int(s.text.split()[1])+1
        return 1

def mfma_passes(op): return 8 if '32x32' in op else 4

def need(prod, cons):
    n=0
    pd=set(prod.defs)
    cu=set(cons.uses); cd=set(cons.defs)
    vec=lambda S:{r for r in S if r[0] in 'va'}
    sg=lambda S:{r for r in S if r[0]=='s'}
    if prod.kind=='valu':
        if vec(pd)&cu:
            if cons.kind=='mfma': n=max(n,2)
            if cons.op.startswith('v_permlane') or 'dpp' in cons.op or 'row_' in cons.text: n=max(n,2)
            if cons.op.startswith(('v_readlane','v_readfirstlane')): n=max(n,1)
            if prod.op.startswith(TRANS) and cons.kind=='valu' and not cons.op.startswith(TRANS): n=max(n,1)
            if prod.op.startswith(TRANS) and cons.kind in('ds','vm'): n=max(n,1)
        if prod.op.startswith('v_dot'):
            if vec(pd)&(cu|cd):
                same = cons.op==prod.op
                if same:
                    ops=[o for o in cons.text.split(';')[0].replace(',',' ').split()[1:]]
                    ab=set(regs_of(ops[1])+regs_of(ops[2]))
                    if vec(pd)&ab: n=max(n,3)
                else: n=max(n,3)
        if sg(pd)&cu:
            if cons.kind=='valu': n=max(n,4 if cons.op.startswith(('v_readlane','v_writelane')) else 2)
            if cons.kind=='vm': n=max(n,5)
            if cons.kind in('salu','smem'): n=max(n,1)
    if prod.kind=='mfma':
        p=mfma_passes(prod.op)
        if cons.kind=='mfma':
            ab=cu-set(cons.cregs) if set(cons.cregs) else cu
            ops=cons.text.split(';')[0].split(None,1)[1].split(',')
            ab=set(regs_of(ops[1])+regs_of(ops[2]))
            if pd&ab: n=max(n,p+4)
            if pd&set(cons.cregs):
                if not(prod.defs==cons.cregs and prod.op==cons.op): n=max(n,p+2)
            elif pd&cd: n=max(n,p+2)
        elif pd&(cu|cd): n=max(n,p+4)
        if cons.kind=='valu' and set(prod.cregs)&cd: n=max(n,p-1)
    if prod.kind=='salu' and ('s','m0') in pd and cons.meta.get('dma'): n=max(n,1)
    if prod.kind=='vm' and 'store' in prod.meta and len(prod.meta['store'])>=3:
        if set(prod.meta['store'])&cd: n=max(n,2)
    return n

class Asm:
    def __init__(s):
        s.L=[]
        s.vm=[]
        s.lg=[]
        s.optdepth=0; s.variant=None
        s.uid=0
    def label(s,name): s.L.append(I(name+':', {'var':s.variant}))
    def newlabel(s,p='L'): s.uid+=1; return f'{p}_{s.uid}'
    def raw(s,text,**meta):
        meta['var']=s.variant
        i=I(text,meta); s.L.append(i); return i
    def comment(s,t): s.L.append(I('; '+t, {'var':s.variant}))
    def _cnt(s,q,idx): return sum(1 for o in q[idx+1:] if not o['opt'])
    def _drop(s,q,idx): del q[:idx+1]
    def wait(s,vm=None,lg=None):
        parts=[]
        if vm is not None and vm>=0:
            parts.append(f'vmcnt({min(63,s._cnt(s.vm,vm))})'); s._drop(s.vm,vm)
        if lg is not None and lg>=0:
            parts.append(f'lgkmcnt({min(15,s._cnt(s.lg,lg))})'); s._drop(s.lg,lg)
        if parts: s.raw('s_waitcnt '+' '.join(parts))
    def wait_tags(s,tags):
        tags=set(tags); idx=-1
        for k,o in enumerate(s.vm):
            if o['tag'] in tags: idx=k
        done=[o['tag'] for o in s.vm[:idx+1]]
        s.wait(vm=idx); return done
    def wait_lg_all(s): s.wait(lg=len(s.lg)-1)
    def wait_vm_all(s): s.wait(vm=len(s.vm)-1)
    def e(s,text,tag=None,opt=False,**meta):
        i=I(text,dict(meta))
        touch=set(i.uses)|set(i.defs)
        vi=li=-1
        for k,o in enumerate(s.vm):
            if o['defs']&touch: vi=k
        for k,o in enumerate(s.lg):
            if o['defs']&touch: li=k
        if s.optdepth and (vi>=0 or li>=0) and not meta.get('optwait'):
            tgt=(s.vm[vi] if vi>=0 else s.lg[li])
            assert tgt['opt'], f'wait for mandatory op inside optional block: {text}'
            parts=[]
            if vi>=0: parts.append(f'vmcnt({min(63,len(s.vm)-1-vi)})'); s.vm[:]=[o for k,o in enumerate(s.vm) if not(k<=vi and o['opt'])]
            if li>=0: parts.append(f'lgkmcnt({min(15,len(s.lg)-1-li)})'); s.lg[:]=[o for k,o in enumerate(s.lg) if not(k<=li and o['opt'])]
            s.raw('s_waitcnt '+' '.join(parts))
        else:
            s.wait(vm=vi,lg=li)
        i.meta['var']=s.variant
        s.L.append(i)
        opt=opt or s.optdepth>0
        if i.kind=='vm': s.vm.append(dict(tag=tag,defs=set(i.defs),opt=opt))
        if i.kind=='ds': s.lg.append(dict(tag=tag,defs=set(i.defs),opt=opt))
        return i
    def begin_var(s,gid,alt,opt=True):
        assert s.variant is None
        s.variant=(gid,alt); s.optdepth+= 1 if opt else 0; s._vo=opt
    def end_var(s):
        s.variant=None; s.optdepth-= 1 if s._vo else 0
    def fix_hazards(s):
        MAXD=22
        total=0; changed=True
        while changed:
            changed=False
            for choice in (0,1,2):
                out=[]; hist=[]
                for c in s.L:
                    var=c.meta.get('var')
                    on = var is None or var[1]==choice
                    if on and c.kind not in('label','none'):
                        if c.op!='s_nop':
                            dist=0; req=0
                            for p in reversed(hist):
                                if p.kind in('valu','mfma','vm') or ('s','m0') in p.defs:
                                    n=need(p,c)
                                    if n>dist: req=max(req,n-dist)
                                dist+=p.states()
                                if dist>=MAXD: break
                            while req>0:
                                m=min(req,16); nop=I(f's_nop {m-1}',{'var':var}); out.append(nop); hist.append(nop)
                                req-=m; total+=1; changed=True
                        hist.append(c)
                        if len(hist)>MAXD+2: hist.pop(0)
                    out.append(c)
                s.L=out
        return total
    def text(s):
        out=[]
        for i in s.L:
            out.append(i.text if i.kind=='label' else '  '+i.text)
        return '\n'.join(out)+'\n'

import subprocess, tempfile, os
PROMO = ('v_mov_b32','v_add_f32','v_mul_f32','v_and_b32','v_or_b32','v_xor_b32','v_lshlrev_b32','v_lshrrev_b32','v_exp_f32','v_rcp_f32','v_rsq_f32',
         'v_fmac_f32','v_add_u32','v_max_f32','v_min_u32','v_max_u32','v_subrev_u32','v_mul_u32_u24','v_permlane32_swap_b32','v_permlane16_swap_b32','v_sub_f32')
def sizes_of(A, pre=""):
    txt = '.amdgcn_target "amdgcn-amd-amdhsa--gfx950"\n.text\n' + pre + A.text() + "L_END:\n s_endpgm\n"
    d = tempfile.mkdtemp(); open(d+"/a.s","w").write(txt)
    r = subprocess.run(["clang","-x","assembler","-target","amdgcn-amd-amdhsa","-mcpu=gfx950","-c",d+"/a.s","-o",d+"/a.o"],capture_output=True,text=True)
    assert r.returncode==0, r.stderr[:2000]
    o = subprocess.run(["llvm-objdump","-d","--mcpu=gfx950",d+"/a.o"],capture_output=True,text=True).stdout
    sz=[]
    for l in o.splitlines():
        m = re.search(r'// [0-9A-F]{12}: ((?:[0-9A-F]{8} ?)+)', l)
        if m: sz.append(4*len(m.group(1).split()))
    return sz[:-1]
def align8(A, pre="", minrun=5):
    sz = sizes_of(A, pre)
    ins = [i for i in A.L if i.kind not in ('label','none')]
    assert len(sz)==len(ins), (len(sz),len(ins))
    size = {id(i):s for i,s in zip(ins,sz)}
    nxt4 = {}
    run=0
    for k in range(len(ins)-1,-1,-1):
        nxt4[id(ins[k])]=run
        run = run+1 if sz[k]==8 else 0
    out=[]; off=0; npromo=nnop=0
    for i in A.L:
        if i.kind in ('label','none'): out.append(i); continue
        s=size[id(i)]
        if s==4 and off%8==0 and nxt4[id(i)]>0:
            if i.op in PROMO:
                j=I(i.text.replace(i.op,i.op+'_e64',1), i.meta); out.append(j); off+=8; npromo+=1; continue
            if nxt4[id(i)]>=minrun:
                if i.op=='s_nop' or i.op.startswith('s_cbranch') or i.op=='s_branch':
                    out.append(I('s_nop 0',{'var':i.meta.get('var')})); out.append(i)
                else:
                    out.append(i); out.append(I('s_nop 0',{'var':i.meta.get('var')}))
                off+=8; nnop+=1; continue
        out.append(i); off+=s
    A.L=out
    return npromo,nnop,off
```

```python
import sys, struct, math, os, copy
sys.path.insert(0, os.path.dirname(__file__))
from asmlib import Asm, align8

NAME = "interleave_layers__sliding_local_dilated__mixer_s_mlp__prompt"
def fbits(x): return struct.unpack('<I', struct.pack('<f', x))[0]
def fl(x): return hex(fbits(x))

FLAG, HFLAG, HH, HX, RB, RA, WSZ = 0, 0x1000, 0x10000, 0x40000, 0x100000, 0x300000, 0xA00000
CSP, STT = 0x30000, 0xC0000
PROF = 0xA00000
OOB = 0x7F000000
NSLOT = 39
MISC = NSLOT * 4096
RR, NM, HS, CST = MISC + 0, MISC + 512, MISC + 1024, MISC + 2048
LDS_BYTES = 163840
sWS, sX, sWQ, sWO, sW1, sW2, sW3, sW4, sOUT, sDBG = 4, 8, 12, 16, 20, 24, 28, 32, 36, 40
sW, sJ, sC, sW1K, sOFF, sRA, sRB, sMODE, sTO, sT0, sT1 = 44, 45, 46, 47, 48, 49, 50, 51, 52, 53, 54
sODD, sHALF, sFLAG, sCNT, sHXS, sONES, sTB, sM0, sM1, sNT = 55, 56, 57, 58, 59, 60, 61, 62, 63, 64
sSTA, sSTB, sH2F, sH2H, sT2, sT3, sMYB, sHHS, sW1KP = 65, 66, 67, 68, 69, 70, 71, 72, 73
sTM = 74
sCS, sSTT, sSTS, sCSO, sCSR = 76, 80, 81, 82, 83
def srd(n): return f"s[{n}:{n+3}]"
vLANE, vWD1, vWDQ, vWD3, vWDH, vXD = 1, 2, 3, 4, 5, 6
vXR = [7, 8, 9]
vWR = [[10, 11, 12], [13, 14, 15]]
vST, vSTO, vFL, vPROF, vHHST, vHXST, vHHLD, vHHW = 16, 17, 18, 19, 20, 21, 22, 23
vS1, vS2, vCHK, vCSA, vL4 = 24, 25, 26, 27, 28
vT = [29, 30, 31]
RES, ACC0, ACC1 = 32, 48, 64
WB, XB = 80, 96
TMP = 112
BIG = 128
aDUMMY = 255
def v(n, k=1): return f"v{n}" if k == 1 else f"v[{n}:{n+k-1}]"
def a(n, k=1): return f"a{n}" if k == 1 else f"a[{n}:{n+k-1}]"

C0 = -2.0 * math.sqrt(2.0 / math.pi) * math.log2(math.e)
C1 = C0 * 0.044715
EPS = 1e-5
RING = set(range(16, NSLOT)); RING17 = set(range(17, NSLOT))


class Gen:
    def __init__(g, stop=None, prof=False, cfg=None):
        g.A = Asm(); g.stop = stop; g.prof = prof
        g.cfg = dict(winA=7, winB=4, winC=5, maxpoll=400000, cpl=2.4, cap=288, wlat=600, codelines=23,
                     w4pre=26, qkvA=6, xlead=4, halo_at=9, cs_at=3, chk_at=11, touch1=6, touch2=9, attn_dma=16, xfirst=8)
        g.cfg.update(cfg or {})
        g.free = set(range(NSLOT)); g.slot = {}; g.visible = set()
        g.pend_free = []
        g.Q = []; g.nstamp = 0; g.stamps = []
        g.gid = 0
        g.now = 0; g.mfree = 0; g.comp = {}; g.fifo = []; g.flast = 0

    def e(g, t, **k):
        i = g.A.e(t, **k)
        if i.kind == 'mfma':
            t0 = max(g.now, g.mfree); g.mfree = t0 + (32 if '32x32' in i.op else 16); g.now = t0 + 8
        elif i.op.startswith(('v_pk_', 'v_dot')): g.now = (g.mfree + 12 if g.mfree > g.now else g.now) + 4
        elif i.op.startswith(('v_exp', 'v_rcp', 'v_rsq', 'v_permlane')): g.now += 8
        else: g.now += 4
        return i
    def c(g, t): g.A.comment(t)
    def stamp(g, name):
        if not g.prof: return
        g.A.wait_lg_all()
        g.A.raw(f"s_memtime s[{sTM}:{sTM+1}]"); g.A.raw("s_waitcnt lgkmcnt(0)")
        g.A.e(f"v_writelane_b32 {v(vPROF)}, s{sTM}, {g.nstamp}")
        g.stamps.append(f"{name} {int(g.now)}"); g.nstamp += 1
        if name in ("start", "end"):
            g.A.raw(f"s_memrealtime s[{sTM}:{sTM+1}]"); g.A.raw("s_waitcnt lgkmcnt(0)")
            g.A.e(f"v_writelane_b32 {v(vPROF)}, s{sTM}, {62 if name == 'start' else 63}")
    def fstamp(g, name):
        if g.cfg.get('fine'): g.stamp(name)
    def opt_begin(g, cond, alt=0):
        g.gid += 1; lab = g.A.newlabel('SK')
        for t in cond[:-1]: g.e(t)
        g.e(f"{cond[-1]} {lab}")
        g.A.begin_var(g.gid, alt); return lab
    def opt_end(g, lab): g.A.end_var(); g.A.label(lab)
    def wave_begin(g, w): return g.opt_begin([f"s_cmp_lg_u32 s{sW}, {w}", "s_cbranch_scc1"])

    def alloc(g, unit, allowed=None):
        cand = sorted(x for x in g.free if allowed is None or x in allowed)
        if not cand: return None
        s_ = cand[0]; g.free.remove(s_); g.slot[unit] = s_; return s_
    def issue(g, u):
        if u.get('lds') is not None: addr, wreg = u['lds'], sW1KP
        else:
            s_ = g.alloc(u['name'], u.get('allowed'))
            if s_ is None: return False
            addr, wreg = s_ * 4096, sW1K
        lines = u.get('lines', 32)
        done = max(g.now + (330 if u.get('aux') else g.cfg['wlat']), g.flast + lines * g.cfg['cpl']); g.flast = done
        g.comp[u['name']] = done; g.fifo.append((done, lines))
        g.e(f"s_add_u32 m0, s{wreg}, {addr}")
        if u['sbase'] is None: g.e(f"s_mov_b32 s{sOFF}, {u['goff']}")
        else: g.e(f"s_add_u32 s{sOFF}, s{u['sbase']}, {u['goff']}")
        g.e(f"buffer_load_dwordx4 {v(u['voff'])}, {srd(u['srd'])}, s{sOFF} offen {u.get('aux', '')} lds".replace("  ", " "), tag=u['name'])
        return True
    def pump(g, n=1):
        k = 0
        while k < n and g.Q:
            if not g.issue(g.Q[0]): break
            g.Q.pop(0); k += 1
        return k
    def inflight(g):
        g.fifo = [x for x in g.fifo if x[0] > g.now]
        return sum(x[1] for x in g.fifo)
    def auto(g, n=1, ok=None):
        k = 0
        while k < n and g.Q and g.inflight() + g.Q[0].get('lines', 32) <= g.cfg['cap']:
            if ok and not ok(g.Q[0], False): break
            u = g.Q[0]
            if not g.issue(u): break
            if ok: ok(u, True)
            g.Q.pop(0); k += 1
        return k
    def budget(g, n, free=lambda u: bool(u.get('aux'))):
        left = [n]
        def ok(u, commit):
            if free(u): return True
            if commit: left[0] -= 1
            return left[0] > 0
        return ok
    def force(g, names):
        names = set(names)
        while any(u['name'] in names for u in g.Q):
            assert g.issue(g.Q[0]), f"no LDS slot for {g.Q[0]['name']} (needed for {names}) free={g.free} slots={g.slot}"
            g.Q.pop(0)
    def release(g, unit): g.pend_free.append(unit)
    def barrier(g, need=(), lds_all=False, extra_tags=()):
        need = [n for n in need if n not in g.visible]
        g.force(need)
        g.A.wait_tags(list(need) + list(extra_tags))
        if lds_all: g.A.wait_lg_all()
        g.A.raw("s_barrier")
        g.now = max([g.now] + [g.comp.get(n, 0) for n in need]) + 30
        out = set(o['tag'] for o in g.A.vm)
        for n in g.slot:
            if n not in out: g.visible.add(n)
        for n in need: g.visible.add(n)
        pend = set(o['tag'] for o in g.A.lg)
        keep = []
        for u in g.pend_free:
            if u in pend: keep.append(u)
            else:
                g.free.add(g.slot.pop(u)); g.visible.discard(u)
        g.pend_free = keep
    def ldsref(g, regs, addr): return regs[addr >> 16], addr & 0xFFFF

    def uW(g, mat, u, tagp, allowed=None):
        n = f"{tagp}W{mat}_{u}"
        if mat in ('o', '1', '2', '4'):
            return dict(name=n, voff=vWD1, srd={'o': sWO, '1': sW1, '2': sW2, '4': sW4}[mat], sbase=None, goff=u * 32 * 1024, allowed=allowed)
        if mat in ('q', 'k', 'v'):
            return dict(name=n, voff=vWDQ, srd=sWQ, sbase=None, goff=u * 32 * 3072 + 'qkv'.index(mat) * 1024, allowed=allowed)
        if mat in ('3a', '3b', '3c'):
            return dict(name=n, voff=vWD3, srd=sW3, sbase=sODD, goff=u * 32 * 3584 + 'abc'.index(mat[1]) * 128, allowed=allowed)
        if mat == '3d':
            return dict(name=n, voff=vWDH, srd=sW3, sbase=sHALF, goff=u * 64 * 3584, allowed=allowed, lines=64)
    def uX(g, base, u, tagp, allowed=None, lds=None):
        return dict(name=f"{tagp}X_{u}", voff=vXD, srd=sWS, sbase=base, goff=u * 4096, aux="sc1", allowed=allowed, lds=lds)
    def uS(g, tagp): return [dict(name=f"{tagp}S_{u}", voff=vXD, srd=sWS, sbase=sSTT, goff=u * 4096, aux="sc1", allowed=RING) for u in (0, 1)]

    def windows(g, regs):
        g.e(f"v_add_u32 {v(regs[1])}, 0x10000, {v(regs[0])}")
        g.e(f"v_add_u32 {v(regs[2])}, 0x20000, {v(regs[0])}")
    def setup_wr(g, shape, perm, dst=None):
        t0, t1, t2 = vT; L = v(vLANE); dst = dst or vWR
        for e_ in (0, 1):
            d = dst[e_][0]
            if shape == 32: g.e(f"v_lshrrev_b32 {v(t0)}, 5, {L}")
            else: g.e(f"v_bfe_u32 {v(t0)}, {L}, 4, 1")
            g.e(f"v_bfe_u32 {v(t1)}, {L}, 2, 2")
            if perm:
                g.e(f"v_lshl_add_u32 {v(d)}, {v(t0)}, 2, {v(t1)}")
                if e_: g.e(f"v_add_u32 {v(d)}, 8, {v(d)}")
            else:
                g.e(f"v_lshl_add_u32 {v(d)}, {v(t0)}, 3, {v(t1)}")
                if e_: g.e(f"v_add_u32 {v(d)}, 4, {v(d)}")
            if shape == 16:
                g.e(f"v_lshrrev_b32 {v(t2)}, 5, {L}")
                g.e(f"v_lshl_add_u32 {v(d)}, {v(t2)}, 4, {v(d)}")
            g.e(f"v_lshlrev_b32 {v(d)}, 7, {v(d)}")
            g.e(f"v_and_b32 {v(t1)}, 2, {v(t1)}")
            if e_: g.e(f"v_xor_b32 {v(t0)}, 1, {v(t0)}")
            g.e(f"v_or_b32 {v(t0)}, {v(t0)}, {v(t1)}")
            if shape == 32:
                g.e(f"v_bfe_u32 {v(t1)}, {L}, 4, 1")
                g.e(f"v_lshl_add_u32 {v(t1)}, s{sNT}, 1, {v(t1)}")
                g.e(f"v_xor_b32 {v(t0)}, {v(t0)}, {v(t1)}")
            else:
                g.e(f"v_xor_b32 {v(t0)}, s{sW}, {v(t0)}")
            g.e(f"v_lshl_add_u32 {v(d)}, {v(t0)}, 5, {v(d)}")
            g.e(f"v_and_b32 {v(t1)}, 3, {L}")
            g.e(f"v_lshl_add_u32 {v(d)}, {v(t1)}, 3, {v(d)}")
            g.windows(dst[e_])
    def setup_xr32(g, rowstride=1024):
        t0, t1, _ = vT; L = v(vLANE); d = vXR[0]
        g.e(f"v_and_b32 {v(t0)}, 31, {L}")
        g.e(f"v_lshl_add_u32 {v(t0)}, s{sTB}, 5, {v(t0)}")
        g.e(f"v_lshlrev_b32 {v(d)}, 4, {v(t0)}")
        g.e(f"v_lshrrev_b32 {v(t1)}, 5, {L}")
        g.e(f"v_mul_u32_u24 {v(t1)}, {rowstride}, {v(t1)}")
        g.e(f"v_add_u32 {v(d)}, {v(d)}, {v(t1)}")
        g.windows(vXR)

    def poll(g, load, cmp_fail, preloaded=False):
        A = g.A; lp = A.newlabel('PL'); dn = A.newlabel('PD'); ok = A.newlabel('PK')
        if preloaded:
            for t in cmp_fail: g.e(t)
            A.raw(f"s_cbranch_vccz {ok}")
        own = A.variant is None
        if own: g.gid += 1; A.begin_var(g.gid, 0)
        A.raw(f"s_mov_b32 s{sCNT}, s{sTO}")
        A.label(lp)
        A.raw(load); A.raw(f"s_add_u32 s{sCNT}, s{sCNT}, 1")
        A.raw(f"s_cmp_gt_u32 s{sCNT}, {g.cfg['maxpoll']}")
        A.raw("s_waitcnt vmcnt(0)")
        A.raw(f"s_cbranch_scc1 {dn}")
        for t in cmp_fail: A.raw(t)
        A.raw(f"s_cbranch_vccnz {lp}")
        A.raw(f"s_mov_b32 s{sCNT}, 0")
        A.label(dn)
        A.raw(f"s_mov_b32 s{sTO}, s{sCNT}")
        if own: A.end_var()
        A.label(ok)
    def handoff(g, phase, stores, mid=None, winB=None, winC=None):
        A = g.A; t0, t1, t2 = vT
        g.pump(g.cfg['winB'] if winB is None else winB)
        g.now += 350
        g.barrier(extra_tags=stores, lds_all=True)
        g.stamp(f"h{phase}_acked")
        lab = g.wave_begin(0)
        sl = A.newlabel('SL'); dn = A.newlabel('SD')
        A.raw(f"v_mov_b32 {v(t0)}, {phase}")
        A.raw(f"v_mov_b32 {v(t1)}, 0")
        A.raw("s_mov_b64 exec, 1")
        A.raw(f"s_cmp_eq_u32 s{sMODE}, 0")
        A.raw(f"s_cbranch_scc1 {sl}")
        A.raw(f"buffer_store_dword {v(t0)}, {v(t1)}, {srd(sWS)}, s{sFLAG} offen")
        A.raw(f"s_branch {dn}")
        A.label(sl)
        A.raw("buffer_wbl2 sc1"); A.raw("s_waitcnt vmcnt(0)")
        A.raw(f"buffer_store_dword {v(t0)}, {v(t1)}, {srd(sWS)}, s{sFLAG} offen sc1")
        A.label(dn)
        A.raw("s_mov_b64 exec, -1")
        g.opt_end(lab)
        if g.stop == phase: return g.finish()
        tt = g.now
        g.pump(g.cfg['winC'] if winC is None else winC)
        if mid: mid()
        lab = g.wave_begin(0)
        g.poll(f"buffer_load_dword {v(t0)}, {v(vFL)}, {srd(sWS)}, 0 offen sc1", [f"v_cmp_gt_u32 vcc, {phase}, {v(t0)}"])
        fa = A.newlabel('FA')
        A.raw(f"s_cmp_lg_u32 s{sMODE}, 0"); A.raw(f"s_cbranch_scc1 {fa}")
        A.raw("buffer_inv sc1"); A.raw("s_waitcnt vmcnt(0)")
        A.label(fa)
        g.opt_end(lab)
        g.now = max(g.now, tt + 650, g.flast)
        g.barrier(lds_all=True)
        g.stamp(f"h{phase}_go")
        return False
    def finish(g):
        if g.prof:
            g.stamp("end")
            g.e(f"s_lshl_b32 s{sT0}, s2, 10")
            g.e(f"s_add_u32 s{sT0}, s{sT0}, {PROF}")
            g.e(f"v_lshlrev_b32 {v(vT[0])}, 2, v0")
            g.e(f"buffer_store_dword {v(vPROF)}, {v(vT[0])}, {srd(sWS)}, s{sT0} offen")
        g.A.raw("s_endpgm")
        g.done = True
        return True

    def gemm32(g, steps, groups, acc, zero, fill=None, ok=None, depth=2, nfill=0, fill_from=0, pre_bar=None, dma=True):
        n = len(steps); fill = fill if fill is not None else []
        nb = 4
        def reads(k):
            st = steps[k]; wb = WB + 4 * (k % nb)
            wr, addr = st['w'][0], st['w'][1]()
            for e_ in (0, 1):
                r, imm = g.ldsref(wr[e_], addr)
                g.e(f"ds_read_b64_tr_b16 {v(wb + 2 * e_, 2)}, {v(r)} offset:{imm}", tag=st.get('wu'))
            if st['x'][0] == 'lds':
                dst = st['x'][2] if st['x'][2] is not None else XB + 4 * (k % nb)
                r, imm = g.ldsref(vXR, st['x'][1]())
                g.e(f"ds_read_b128 {v(dst, 4)}, {v(r)} offset:{imm}", tag=st.get('xu'))
                st['xr'] = dst
            else: st['xr'] = st['x'][1]
            st['wr'] = wb
            for u in st.get('rel', []): g.release(u)
        for i in range(-depth, n):
            k = i + depth
            if k < n:
                if k in groups:
                    if dma: g.auto(8, ok)
                    if pre_bar: pre_bar(k)
                    g.barrier(groups[k])
                reads(k)
            if i >= 0:
                st = steps[i]
                cc = "0" if (zero and i == 0) else v(acc, 16)
                g.e(f"v_mfma_f32_32x32x16_bf16 {v(acc, 16)}, {v(st['wr'], 4)}, {v(st['xr'], 4)}, {cc}")
                if i >= fill_from:
                    for _ in range(nfill):
                        if fill: fill.pop(0)()
                if dma: g.auto(1, ok)
    def stats_out(g, acc):
        T = TMP
        for q in range(4): g.e(f"v_pk_add_f32 {v(T + 2 * q, 2)}, {v(acc + 4 * q, 2)}, {v(acc + 4 * q + 2, 2)}")
        g.e(f"v_pk_mul_f32 {v(T + 8, 2)}, {v(acc, 2)}, {v(acc, 2)}")
        for q in range(1, 8): g.e(f"v_pk_fma_f32 {v(T + 8, 2)}, {v(acc + 2 * q, 2)}, {v(acc + 2 * q, 2)}, {v(T + 8, 2)}")
        g.e(f"v_pk_add_f32 {v(T, 2)}, {v(T, 2)}, {v(T + 2, 2)}")
        g.e(f"v_pk_add_f32 {v(T + 4, 2)}, {v(T + 4, 2)}, {v(T + 6, 2)}")
        g.e(f"v_add_f32 {v(T + 8)}, {v(T + 8)}, {v(T + 9)}")
        g.e(f"v_pk_add_f32 {v(T, 2)}, {v(T, 2)}, {v(T + 4, 2)}")
        g.e(f"v_add_f32 {v(T)}, {v(T)}, {v(T + 1)}")
        g.e(f"v_permlane32_swap_b32 {v(T)}, {v(T + 8)}")
        g.e(f"v_add_f32 {v(T)}, {v(T)}, {v(T + 8)}")
        g.e(f"buffer_store_dword {v(T)}, {v(vL4)}, {srd(sWS)}, s{sSTS} offen", tag="st")
    def stats_in(g, tagp, double):
        T = TMP + 10; B = ACC1
        nm, k0, k1, ir, r, nmr = T, T + 1, T + 2, T + 3, T + 4, T + 5
        t0, t1, t2 = vT; ops = []
        E = lambda t, **k: ops.append(lambda: g.e(t, **k))
        def addr():
            s0, s1 = g.slot[f"{tagp}S_0"], g.slot[f"{tagp}S_1"]
            g.e(f"s_mul_i32 s{sT2}, s{sTB}, {(s1 - s0) * 4096}"); g.e(f"s_add_u32 s{sT2}, s{sT2}, {s0 * 4096}")
            g.e(f"v_add_u32 {v(t0)}, s{sT2}, {v(vL4)}")
        ops.append(addr)
        for i in range(8): E(f"ds_read2st64_b32 {v(B + 2 * i, 2)}, {v(t0)} offset0:{2 * i} offset1:{2 * i + 1}", tag=f"{tagp}S_0")
        ops.append(lambda: (g.release(f"{tagp}S_0"), g.release(f"{tagp}S_1")))
        for st in (1, 2, 4, 8):
            for i in range(0, 16, 2 * st): E(f"v_add_f32 {v(B + i)}, {v(B + i)}, {v(B + i + st)}")
        E(f"v_mov_b32 {v(t1)}, {v(B)}")
        E(f"v_permlane32_swap_b32 {v(B)}, {v(t1)}")
        E(f"v_mul_f32 {v(nm)}, {fl(-1.0 / 512)}, {v(B)}")
        E(f"v_mul_f32 {v(t1)}, {fl(1.0 / 512)}, {v(t1)}")
        E(f"v_fma_f32 {v(t1)}, -{v(nm)}, {v(nm)}, {v(t1)}")
        E(f"v_max_f32 {v(t1)}, 0, {v(t1)}")
        E(f"v_add_f32 {v(t0)}, {fl(EPS)}, {v(t1)}")
        E(f"v_rsq_f32 {v(r)}, {v(t0)}")
        if double:
            E(f"v_mul_f32 {v(t1)}, {v(t1)}, {v(r)}")
            E(f"v_mul_f32 {v(t1)}, {v(t1)}, {v(r)}")
            E(f"v_add_f32 {v(t1)}, {fl(EPS)}, {v(t1)}")
            E(f"v_rsq_f32 {v(t1)}, {v(t1)}")
            E(f"v_mul_f32 {v(nmr)}, {v(nm)}, {v(r)}")
            E(f"v_mul_f32 {v(t0)}, {v(t1)}, {v(r)}")
        else:
            E(f"v_mul_f32 {v(nmr)}, {v(nm)}, {v(r)}")
            E(f"v_mov_b32 {v(t0)}, {v(r)}")
        E(f"v_rcp_f32 {v(ir)}, {v(t0)}")
        E(f"v_mul_f32 {v(k0)}, {fl(C0)}, {v(t0)}")
        E(f"v_mul_f32 {v(t1)}, {v(t0)}, {v(t0)}")
        E(f"v_mul_f32 {v(t1)}, {v(t1)}, {v(t0)}")
        E(f"v_mul_f32 {v(k1)}, {fl(C1)}, {v(t1)}")
        return ops
    def bc(g, r): return v(r & ~1, 2), r & 1
    def gelu_ops(g, acc, n, csaddr, csoff, out, packed, csbuf=None):
        T = TMP + 10; nm, k0, k1, ir = T, T + 1, T + 2, T + 3
        ops = []; E = lambda t: ops.append(lambda: g.e(t))
        def pk(op, d, s0, s1, s2=None):
            txt = []; sel = []; hi = []
            for s_ in [s0, s1] + ([s2] if s2 is not None else []):
                if isinstance(s_, tuple): t, b = g.bc(s_[0]); txt.append(t); sel.append(b); hi.append(b)
                else: txt.append(v(s_, 2)); sel.append(0); hi.append(1)
            E(f"{op} {v(d, 2)}, {', '.join(txt)} op_sel:[{','.join(map(str, sel))}] op_sel_hi:[{','.join(map(str, hi))}]")
        nq = n // 4
        cb = (lambda i: csbuf + 4 * i) if csbuf is not None else (lambda i: TMP + 4 * (i & 1))
        rd = lambda i: E(f"ds_read_b128 {v(cb(i), 4)}, {v(csaddr)} offset:{csoff + 32 * i}")
        if csbuf is None: rd(0); rd(1)
        for i in range(nq):
            if packed:
                for h in (0, 2): pk("v_pk_fma_f32", acc + 4 * i + h, cb(i) + h, (nm,), acc + 4 * i + h)
            else:
                for h in range(4): E(f"v_fmac_f32 {v(acc + 4 * i + h)}, {v(cb(i) + h)}, {v(nm)}")
            if csbuf is None and i + 2 < nq: rd(i + 2)
        X = TMP
        for p in range(0, n, 4):
            t = acc + p
            if packed:
                for h in (0, 2): pk("v_pk_mul_f32", X + h, t + h, t + h)
                for h in (0, 2): pk("v_pk_fma_f32", X + h, X + h, (k1,), (k0,))
                for h in (0, 2): pk("v_pk_mul_f32", X + h, X + h, t + h)
            else:
                for h in range(4): E(f"v_mul_f32 {v(X + h)}, {v(t + h)}, {v(t + h)}")
                for h in range(4): E(f"v_fma_f32 {v(X + h)}, {v(X + h)}, {v(k1)}, {v(k0)}")
                for h in range(4): E(f"v_mul_f32 {v(X + h)}, {v(X + h)}, {v(t + h)}")
            for h in range(4): E(f"v_exp_f32 {v(X + h)}, {v(X + h)}")
            if packed:
                for h in (0, 2): pk("v_pk_fma_f32", X + h, X + h, (ir,), (ir,))
            else:
                for h in range(4): E(f"v_fma_f32 {v(X + h)}, {v(X + h)}, {v(ir)}, {v(ir)}")
            for h in range(4): E(f"v_rcp_f32 {v(X + h)}, {v(X + h)}")
            if packed:
                for h in (0, 2): pk("v_pk_mul_f32", X + h, X + h, t + h)
            else:
                for h in range(4): E(f"v_mul_f32 {v(X + h)}, {v(X + h)}, {v(t + h)}")
            for h in (0, 2): E(f"v_cvt_pk_bf16_f32 {v(out + (p + h) // 2)}, {v(X + h)}, {v(X + h + 1)}")
        return ops
    def pack16(g, acc, out):
        for q in range(8): g.e(f"v_cvt_pk_bf16_f32 {v(out + q)}, {v(acc + 2 * q)}, {v(acc + 2 * q + 1)}")
    def store_x(g, pk, sbase, tag):
        g.e(f"buffer_store_dwordx4 {v(pk, 4)}, {v(vST)}, {srd(sWS)}, s{sbase} offen", tag=tag)
        g.e(f"buffer_store_dwordx4 {v(pk + 4, 4)}, {v(vST)}, {srd(sWS)}, s{sbase} offen offset:2048", tag=tag)
    def touch3(g, srdn, nrows, rs, wave, extra=0):
        if not g.cfg.get('t3', 1): return
        lab = g.wave_begin(wave)
        g.A.raw(f"s_lshr_b32 s{sT0}, s2, 3"); g.A.raw(f"s_mul_i32 s{sT0}, s{sT0}, {nrows * rs}")
        g.A.raw(f"s_lshl_b32 s{sT1}, s{sJ}, 7"); g.A.raw(f"s_sub_u32 s{sT0}, s{sT0}, s{sT1}"); g.A.raw(f"s_add_u32 s{sT0}, s{sT0}, {384 + extra}")
        g.A.raw(f"v_mul_u32_u24 {v(vT[0])}, {rs}, {v(vLANE)}"); g.A.raw(f"v_add_u32 {v(vT[0])}, s{sT0}, {v(vT[0])}")
        g.A.raw(f"s_mov_b32 exec_lo, {hex((1 << min(32, nrows)) - 1)}"); g.A.raw(f"s_mov_b32 exec_hi, {hex((1 << max(0, nrows - 32)) - 1)}")
        g.A.raw(f"buffer_load_dword {a(aDUMMY)}, {v(vT[0])}, {srd(srdn)}, 0 offen")
        g.A.raw("s_mov_b64 exec, -1")
        g.opt_end(lab)
    def touch(g, srdn, nlines, sexpr, wave):
        lab = g.wave_begin(wave)
        for t in sexpr: g.A.raw(t)
        g.A.raw(f"v_lshlrev_b32 {v(vT[0])}, 7, {v(vLANE)}")
        if nlines < 64:
            g.A.raw(f"s_mov_b32 exec_lo, {hex((1 << min(32, nlines)) - 1)}")
            g.A.raw(f"s_mov_b32 exec_hi, {hex((1 << max(0, nlines - 32)) - 1)}")
        g.A.raw(f"buffer_load_dword {a(aDUMMY)}, {v(vT[0])}, {srd(srdn)}, s{sT0} offen")
        if nlines < 64: g.A.raw("s_mov_b64 exec, -1")
        g.opt_end(lab)

    def prologue(g):
        A = g.A; t0, t1, t2 = vT; L = v(vLANE)
        A.raw("s_cmp_ge_u32 s2, 256"); A.raw("s_cbranch_scc1 L_END")
        for s_, off in ((sX, 0), (sWQ, 8), (sWS, 80), (sWO, 16), (sW1, 32), (sW2, 40), (sW3, 48), (sW4, 56), (sOUT, 64), (sDBG, 72)):
            A.raw(f"s_load_dwordx2 s[{s_}:{s_+1}], s[0:1], {off}")
        g.e(f"v_lshrrev_b32 {L}, 6, v0")
        g.e(f"v_readfirstlane_b32 s{sW}, {L}")
        g.e(f"v_and_b32 {L}, 63, v0")
        g.e(f"s_lshr_b32 s{sJ}, s2, 3"); g.e(f"s_and_b32 s{sJ}, s{sJ}, 7")
        g.e(f"s_and_b32 s{sC}, s2, 7"); g.e(f"s_lshl_b32 s{sC}, s{sC}, 2")
        g.e(f"s_lshr_b32 s{sT0}, s2, 6"); g.e(f"s_add_u32 s{sC}, s{sC}, s{sT0}")
        g.e(f"s_lshl_b32 s{sW1K}, s{sW}, 10"); g.e(f"s_mul_i32 s{sW1KP}, s{sW}, 1088")
        g.e(f"s_lshr_b32 s{sTB}, s{sW}, 1"); g.e(f"s_and_b32 s{sNT}, s{sW}, 1")
        for s_, n in ((sX, 2 << 20), (sWQ, 512 * 3072), (sWS, WSZ + (0x40000 if g.prof else 0)), (sWO, 1 << 19), (sW1, 1 << 19), (sW2, 1 << 19),
                      (sW3, 512 * 3584), (sW4, 1792 * 1024), (sOUT, 2 << 20), (sDBG, 256)):
            g.e(f"s_mov_b32 s{s_+2}, {n}"); g.e(f"s_mov_b32 s{s_+3}, 0x20000")
        g.e(f"s_mov_b32 s{sCS+3}, 0x20000")
        g.e(f"s_mov_b32 s{sONES}, 0x3f803f80"); g.e(f"s_mov_b32 s{sTO}, 0"); g.e(f"s_mov_b32 s{sMODE}, 0")
        if g.prof: g.e(f"v_mov_b32 {v(vPROF)}, 0")
        g.e(f"v_lshlrev_b32 {v(vXD)}, 4, v0")
        g.e(f"s_lshl_b32 s{sT2}, s{sC}, 16"); g.e(f"s_sub_u32 s{sT2}, s{sT2}, 16384")
        g.e(f"s_add_u32 s{sT3}, s{sT2}, s{sW1K}")
        g.e(f"v_lshrrev_b32 {v(t0)}, 3, {L}")
        g.e(f"v_lshl_add_u32 {v(t0)}, s{sW}, 3, {v(t0)}")
        g.e(f"v_bfe_u32 {v(t1)}, {L}, 4, 1")
        g.e(f"v_lshlrev_b32 {v(t1)}, 1, {v(t1)}")
        g.e(f"v_lshrrev_b32 {v(t2)}, 5, {L}")
        g.e(f"v_xor_b32 {v(t2)}, s{sNT}, {v(t2)}")
        g.e(f"v_or_b32 {v(t1)}, {v(t1)}, {v(t2)}")
        g.e(f"v_lshlrev_b32 {v(t1)}, 1, {v(t1)}")
        g.e(f"v_and_b32 {v(t2)}, 7, {L}")
        g.e(f"v_xor_b32 {v(t1)}, {v(t1)}, {v(t2)}")
        g.e(f"v_lshlrev_b32 {v(t1)}, 4, {v(t1)}")
        for d, rs in ((vWD1, 1024), (vWDQ, 3072), (vWD3, 3584)):
            g.e(f"v_mul_u32_u24 {v(d)}, {rs}, {v(t0)}")
            g.e(f"v_add_u32 {v(d)}, {v(d)}, {v(t1)}")
        A.raw("s_waitcnt lgkmcnt(0)")
        g.stamp("start")
        g.touch(sWQ, 48, [f"s_mul_i32 s{sT0}, s2, 6144"], 0)
        cl = g.cfg['codelines']
        lab = g.wave_begin(1)
        A.raw(f"s_getpc_b64 s[{sM0}:{sM1}]")
        A.raw(f"s_lshr_b32 s{sT0}, s2, 3"); A.raw(f"s_mul_i32 s{sT0}, s{sT0}, {cl * 128}")
        A.raw(f"v_lshlrev_b32 {v(t0)}, 7, {L}"); A.raw(f"v_add_u32 {v(t0)}, s{sT0}, {v(t0)}")
        A.raw(f"s_mov_b32 s{sT1}, CODE_BYTES"); A.raw(f"v_min_u32 {v(t0)}, s{sT1}, {v(t0)}")
        A.raw(f"s_mov_b64 exec, {hex((1 << cl) - 1)}")
        A.raw(f"global_load_dword {a(aDUMMY)}, {v(t0)}, s[{sM0}:{sM1}]")
        A.raw("s_mov_b64 exec, -1")
        g.opt_end(lab)
        g.e(f"v_xor_b32 {v(t0)}, s{sW}, {L}")
        for k in range(4):
            g.e(f"v_xor_b32 {v(t1)}, {4 * k}, {v(t0)}"); g.e(f"v_lshlrev_b32 {v(t1)}, 4, {v(t1)}")
            g.e(f"v_add_u32 {v(TMP + 8 + k)}, s{sT3}, {v(t1)}")
            if k: g.e(f"v_add_u32 {v(TMP + 8 + k)}, {k * 4096}, {v(TMP + 8 + k)}")
        for i in range(20):
            g.e(f"s_add_u32 m0, s{sW1K}, {i * 4096}")
            if i >= 4: g.e(f"v_add_u32 {v(TMP + 8 + i % 4)}, 0x4000, {v(TMP + 8 + i % 4)}")
            g.e(f"buffer_load_dwordx4 {v(TMP + 8 + i % 4)}, {srd(sX)}, 0 offen lds", tag="x0")
        for s_ in range(20): g.free.remove(s_); g.slot[f"x0_{s_}"] = s_
        g.flast = g.now + 2500; g.comp["x0"] = g.flast
        g.e(f"s_lshr_b32 s{sT0}, s2, 2")
        g.e(f"s_cmp_lt_u32 s{sT0}, 32")
        g.e(f"s_cselect_b32 s{sCS}, s{sW1}, s{sW3}"); g.e(f"s_cselect_b32 s{sCS+1}, s{sW1+1}, s{sW3+1}"); g.e(f"s_cselect_b32 s{sCS+2}, s{sW1+2}, s{sW3+2}")
        g.e(f"s_movk_i32 s{sT2}, 3584"); g.e(f"s_cselect_b32 s{sCSR}, 1024, s{sT2}"); g.e(f"s_cselect_b32 s{sT1}, 24, 32")
        g.e(f"s_cselect_b64 s[{sM0}:{sM1}], -1, 0")
        g.e(f"v_cndmask_b32 {v(vCHK)}, {v(vWD3)}, {v(vWD1)}, s[{sM0}:{sM1}]")
        g.e(f"s_cmp_lt_u32 s{sT0}, 24")
        g.e(f"s_cselect_b32 s{sCS}, s{sWQ}, s{sCS}"); g.e(f"s_cselect_b32 s{sCS+1}, s{sWQ+1}, s{sCS+1}"); g.e(f"s_cselect_b32 s{sCS+2}, s{sWQ+2}, s{sCS+2}")
        g.e(f"s_cselect_b32 s{sCSR}, 3072, s{sCSR}"); g.e(f"s_cselect_b32 s{sT1}, 0, s{sT1}")
        g.e(f"s_cselect_b64 s[{sM0}:{sM1}], -1, 0")
        g.e(f"v_cndmask_b32 {v(vCHK)}, {v(vCHK)}, {v(vWDQ)}, s[{sM0}:{sM1}]")
        g.e(f"s_cmp_lt_u32 s{sT0}, 60"); g.e(f"s_cselect_b32 s{sCS+2}, s{sCS+2}, 0")
        g.e(f"s_sub_u32 s{sT0}, s{sT0}, s{sT1}"); g.e(f"s_lshl_b32 s{sT0}, s{sT0}, 7")
        g.e(f"s_lshl_b32 s{sCSR}, s{sCSR}, 5")
        g.e(f"s_and_b32 s{sT1}, s2, 3"); g.e(f"s_lshl_b32 s{sT1}, s{sT1}, 2"); g.e(f"s_mul_i32 s{sCSO}, s{sT1}, s{sCSR}")
        g.e(f"s_add_u32 s{sCSO}, s{sCSO}, s{sT0}")
        g.e(f"s_lshl_b32 s{sFLAG}, s{sC}, 7"); g.e(f"s_lshl_b32 s{sT0}, s{sJ}, 2"); g.e(f"s_add_u32 s{sFLAG}, s{sFLAG}, s{sT0}")
        g.e(f"s_lshr_b32 s{sT0}, s{sJ}, 1")
        g.e(f"s_and_b32 s{sT1}, s{sT0}, 1"); g.e(f"s_lshl_b32 s{sT1}, s{sT1}, 1")
        g.e(f"s_add_u32 s{sT2}, s{sC}, 1"); g.e(f"s_sub_u32 s{sT2}, s{sT2}, s{sT1}")
        g.e(f"s_lshl_b32 s{sHHS}, s{sT2}, 11"); g.e(f"s_lshl_b32 s{sT0}, s{sT0}, 9"); g.e(f"s_add_u32 s{sHHS}, s{sHHS}, s{sT0}")
        g.e(f"s_and_b32 s{sT0}, s{sJ}, 1"); g.e(f"s_lshl_b32 s{sT0}, s{sT0}, 7"); g.e(f"s_add_u32 s{sHHS}, s{sHHS}, s{sT0}")
        g.e(f"s_add_u32 s{sHHS}, s{sHHS}, {HH}")
        g.e(f"s_cmp_lt_u32 s{sT2}, 32"); g.e(f"s_cselect_b32 s{sHHS}, s{sHHS}, {OOB}")
        lab = g.wave_begin(2)
        A.raw(f"v_mov_b32 {v(TMP)}, 0"); A.raw(f"v_lshlrev_b32 {v(t0)}, 12, {L}"); A.raw("s_mov_b64 exec, 3")
        A.raw(f"buffer_store_dword {v(TMP)}, {v(t0)}, {srd(sWS)}, s{sFLAG} offen sc1")
        A.raw("s_mov_b64 exec, -1")
        for r in range(4): A.raw(f"v_mov_b32 {v(TMP + 4 + r)}, -1")
        A.raw(f"v_and_b32 {v(t0)}, 7, {L}"); A.raw(f"v_lshlrev_b32 {v(t0)}, 4, {v(t0)}")
        A.raw(f"v_bfe_u32 {v(t1)}, {L}, 3, 1"); A.raw(f"v_lshl_add_u32 {v(t0)}, {v(t1)}, 8, {v(t0)}")
        A.raw(f"v_bfe_u32 {v(t1)}, {L}, 4, 1"); A.raw(f"v_lshl_add_u32 {v(t0)}, {v(t1)}, 16, {v(t0)}")
        A.raw("s_mov_b32 exec_hi, 0")
        A.raw(f"buffer_store_dwordx4 {v(TMP + 4, 4)}, {v(t0)}, {srd(sWS)}, s{sHHS} offen sc1")
        A.raw("s_mov_b64 exec, -1")
        g.opt_end(lab)
        g.e(f"s_lshl_b32 s{sT0}, s{sJ}, 7")
        for s_ in (sWQ, sWO, sW1, sW2, sW4):
            g.e(f"s_add_u32 s{s_}, s{s_}, s{sT0}"); g.e(f"s_addc_u32 s{s_+1}, s{s_+1}, 0"); g.e(f"s_sub_u32 s{s_+2}, s{s_+2}, s{sT0}")
        g.e(f"s_mul_i32 s{sT0}, s{sJ}, 448")
        g.e(f"s_add_u32 s{sW3}, s{sW3}, s{sT0}"); g.e(f"s_addc_u32 s{sW3+1}, s{sW3+1}, 0"); g.e(f"s_sub_u32 s{sW3+2}, s{sW3+2}, s{sT0}")
        for s_ in range(16):
            for m in 'qkv': g.Q.append(g.uW(m, s_, 'a', allowed=set(range(20, NSLOT))))
        for u in range(4): g.alloc(f"cs_{u}", {35 + u})
        g.pump(9)
        for u in range(4):
            g.e(f"s_add_u32 m0, s{sW1K}, {(35 + u) * 4096}")
            if u: g.e(f"s_add_u32 s{sCSO}, s{sCSO}, s{sCSR}")
            g.e(f"buffer_load_dwordx4 {v(vCHK)}, {srd(sCS)}, s{sCSO} offen lds", tag=f"cs_{u}")
        g.pump(6)
        g.e(f"v_lshrrev_b32 {v(t0)}, 2, {L}")
        g.e(f"v_lshl_add_u32 {v(t0)}, s{sW}, 4, {v(t0)}")
        g.e(f"v_mul_u32_u24 {v(vWDH)}, 3584, {v(t0)}")
        g.e(f"v_and_b32 {v(t1)}, 3, {L}")
        g.e(f"v_lshl_add_u32 {v(vWDH)}, {v(t1)}, 4, {v(vWDH)}")
        g.e(f"v_lshlrev_b32 {v(vL4)}, 2, {L}")
        g.e(f"s_and_b32 s{sT0}, s{sJ}, 1"); g.e(f"s_lshl_b32 s{sODD}, s{sT0}, 6")
        g.e(f"s_cmp_eq_u32 s{sT0}, 0"); g.e(f"s_cselect_b32 s{sHALF}, 384, 0")
        g.e(f"s_mul_i32 s{sRA}, s{sC}, 229376"); g.e(f"s_add_u32 s{sRA}, s{sRA}, {RA}")
        g.e(f"s_lshl_b32 s{sRB}, s{sC}, 16"); g.e(f"s_add_u32 s{sRB}, s{sRB}, {RB}")
        g.e(f"s_lshl_b32 s{sT1}, s{sJ}, 13")
        g.e(f"s_add_u32 s{sSTA}, s{sRA}, s{sT1}"); g.e(f"s_add_u32 s{sSTB}, s{sRB}, s{sT1}")
        g.e(f"s_lshl_b32 s{sSTT}, s{sC}, 13"); g.e(f"s_add_u32 s{sSTT}, s{sSTT}, {STT}")
        g.e(f"s_lshl_b32 s{sT1}, s{sJ}, 1"); g.e(f"s_add_u32 s{sT1}, s{sT1}, s{sNT}"); g.e(f"s_lshl_b32 s{sT1}, s{sT1}, 8")
        g.e(f"s_lshl_b32 s{sT2}, s{sTB}, 12"); g.e(f"s_add_u32 s{sT1}, s{sT1}, s{sT2}"); g.e(f"s_add_u32 s{sSTS}, s{sSTT}, s{sT1}")
        g.e(f"s_mul_i32 s{sT1}, s{sJ}, {224 * 128}"); g.e(f"s_add_u32 s{sT1}, s{sT1}, s{sRA}")
        g.e(f"s_lshl_b32 s{sT2}, s{sODD}, 6"); g.e(f"s_add_u32 s{sH2F}, s{sT1}, s{sT2}")
        g.e(f"s_lshl_b32 s{sT2}, s{sHALF}, 6"); g.e(f"s_add_u32 s{sH2H}, s{sT1}, s{sT2}")
        g.e(f"s_lshl_b32 s{sHXS}, s{sC}, 14"); g.e(f"s_add_u32 s{sHXS}, s{sHXS}, {HX}")
        g.e(f"s_cmp_eq_u32 s{sC}, 0"); g.e(f"s_cselect_b32 s{sHXS}, {OOB}, s{sHXS}")
        g.e(f"s_getreg_b32 s{sMYB}, hwreg(HW_REG_XCC_ID)"); g.e(f"s_and_b32 s{sMYB}, s{sMYB}, 15"); g.e(f"s_or_b32 s{sMYB}, s{sMYB}, 0x80")
        g.e(f"v_and_b32 {v(t0)}, 31, {L}")
        g.e(f"v_lshl_add_u32 {v(t0)}, s{sTB}, 5, {v(t0)}")
        g.e(f"v_lshrrev_b32 {v(t1)}, 5, {L}")
        g.e(f"v_lshlrev_b32 {v(vST)}, 4, {v(t0)}")
        g.e(f"v_lshl_add_u32 {v(vST)}, {v(t1)}, 10, {v(vST)}")
        g.e(f"s_lshl_b32 s{sT0}, s{sNT}, 12"); g.e(f"v_add_u32 {v(vST)}, s{sT0}, {v(vST)}")
        g.e(f"s_lshl_b32 s{sT0}, s{sNT}, 7"); g.e(f"s_add_u32 s{sT0}, s{sT0}, {CST}")
        g.e(f"v_lshlrev_b32 {v(vCSA)}, 4, {v(t1)}"); g.e(f"v_add_u32 {v(vCSA)}, s{sT0}, {v(vCSA)}")
        g.e(f"v_lshlrev_b32 {v(vSTO)}, 4, {L}"); g.e(f"s_lshl_b32 s{sT0}, s{sW}, 11"); g.e(f"v_add_u32 {v(vSTO)}, s{sT0}, {v(vSTO)}")
        g.e(f"v_and_b32 {v(vFL)}, 7, {L}"); g.e(f"v_lshlrev_b32 {v(vFL)}, 2, {v(vFL)}")
        g.e(f"s_lshl_b32 s{sT0}, s{sC}, 7"); g.e(f"v_add_u32 {v(vFL)}, s{sT0}, {v(vFL)}")
        g.e(f"s_lshr_b32 s{sT0}, s{sJ}, 2"); g.e(f"s_add_u32 s{sT0}, s{sT0}, 1")
        g.e(f"s_sub_u32 s{sT1}, 64, s{sT0}"); g.e(f"s_bitcmp1_b32 s{sJ}, 1"); g.e(f"s_cselect_b32 s{sT1}, 0, s{sT1}")
        g.e(f"v_subrev_u32 {v(t2)}, s{sT1}, {v(t0)}")
        g.e(f"v_cmp_gt_u32 s[{sM0}:{sM1}], s{sT0}, {v(t2)}")
        g.e(f"v_lshlrev_b32 {v(t2)}, 8, {v(t2)}")
        g.e(f"v_lshl_add_u32 {v(t2)}, {v(t1)}, 4, {v(t2)}")
        g.e(f"s_lshl_b32 s{sT1}, s{sNT}, 6"); g.e(f"v_add_u32 {v(t2)}, s{sT1}, {v(t2)}")
        g.e(f"v_mov_b32 {v(vHHST)}, {OOB}")
        g.e(f"v_cndmask_b32 {v(vHHST)}, {v(vHHST)}, {v(t2)}, s[{sM0}:{sM1}]")
        g.e(f"v_subrev_u32 {v(t2)}, 48, {v(t0)}")
        g.e(f"v_cmp_gt_u32 s[{sM0}:{sM1}], 16, {v(t2)}")
        g.e(f"v_lshlrev_b32 {v(t2)}, 4, {v(t2)}")
        g.e(f"v_lshl_add_u32 {v(t2)}, {v(t1)}, 8, {v(t2)}")
        g.e(f"s_lshl_b32 s{sT0}, s{sJ}, 1"); g.e(f"s_add_u32 s{sT0}, s{sT0}, s{sNT}"); g.e(f"s_lshl_b32 s{sT0}, s{sT0}, 10")
        g.e(f"s_add_u32 s{sT1}, s{sC}, 1"); g.e(f"s_lshl_b32 s{sT1}, s{sT1}, 14"); g.e(f"s_add_u32 s{sT0}, s{sT0}, s{sT1}")
        g.e(f"s_add_u32 s{sT0}, s{sT0}, {HX}")
        g.e(f"s_cmp_eq_u32 s{sC}, 31"); g.e(f"s_cselect_b32 s{sT0}, {OOB}, s{sT0}")
        g.e(f"v_add_u32 {v(t2)}, s{sT0}, {v(t2)}")
        g.e(f"v_mov_b32 {v(vHXST)}, {OOB}")
        g.e(f"v_cndmask_b32 {v(vHXST)}, {v(vHXST)}, {v(t2)}, s[{sM0}:{sM1}]")
        g.e(f"s_add_u32 s{sT0}, s{sTB}, 1"); g.e(f"s_lshl_b32 s{sT0}, s{sT0}, 4")
        g.e(f"v_and_b32 {v(t0)}, 15, {L}"); g.e(f"v_lshrrev_b32 {v(t1)}, 4, {L}")
        g.e(f"v_cmp_gt_u32 s[{sM0}:{sM1}], s{sT0}, {L}")
        g.e(f"v_lshlrev_b32 {v(t2)}, 4, {L}")
        g.e(f"s_lshl_b32 s{sT1}, s{sC}, 11"); g.e(f"s_lshl_b32 s{sT2}, s{sW}, 9"); g.e(f"s_add_u32 s{sT1}, s{sT1}, s{sT2}"); g.e(f"s_add_u32 s{sT1}, s{sT1}, {HH}")
        g.e(f"s_mul_i32 s{sT2}, s{sNT}, 31"); g.e(f"s_cmp_eq_u32 s{sC}, s{sT2}"); g.e(f"s_cselect_b32 s{sT1}, {OOB}, s{sT1}")
        g.e(f"v_add_u32 {v(t2)}, s{sT1}, {v(t2)}")
        g.e(f"v_mov_b32 {v(vHHLD)}, {OOB}")
        g.e(f"v_cndmask_b32 {v(vHHLD)}, {v(vHHLD)}, {v(t2)}, s[{sM0}:{sM1}]")
        g.e(f"v_lshl_add_u32 {v(t0)}, s{sW}, 4, {v(t0)}"); g.e(f"v_mul_u32_u24 {v(t0)}, 1088, {v(t0)}")
        g.e(f"s_sub_u32 s{sT1}, 1, s{sTB}"); g.e(f"s_cmp_eq_u32 s{sNT}, 0"); g.e(f"s_cselect_b32 s{sT1}, s{sT1}, 66")
        g.e(f"v_add_u32 {v(t1)}, s{sT1}, {v(t1)}")
        g.e(f"v_lshl_add_u32 {v(vHHW)}, {v(t1)}, 4, {v(t0)}")
        for r in (vS1, vS2): g.e(f"v_mov_b32 {v(r)}, 0")

    def colsum_strip(g):
        t0, t1, t2 = vT; L = v(vLANE)
        regs = [[XB + 8, XB + 9, XB + 10], [XB + 11, XB + 12, XB + 13]]
        g.setup_wr(32, False, regs)
        for r in range(4): g.e(f"v_mov_b32 {v(XB + r)}, s{sONES}")
        steps = [dict(w=(regs, lambda s_=s_: (35 + s_ // 2) * 4096 + (s_ & 1) * 2048), wu=f"cs_{s_ // 2}", x=('reg', XB),
                      rel=[f"cs_{s_ // 2}"] if s_ & 1 else []) for s_ in range(8)]
        g.gemm32(steps, {}, ACC0, True, dma=False)
        g.e(f"v_lshrrev_b32 {v(t0)}, 1, {L}")
        g.e(f"v_and_b32 {v(t1)}, 31, {L}"); g.e(f"v_add_u32 {v(t1)}, s{sTB}, {v(t1)}")
        g.e(f"v_cmp_eq_u32 s[{sM0}:{sM1}], 0, {v(t1)}")
        g.e(f"v_mov_b32 {v(t1)}, {OOB}")
        g.e(f"s_lshr_b32 s{sT0}, s2, 2"); g.e(f"s_lshl_b32 s{sT0}, s{sT0}, 8")
        g.e(f"s_and_b32 s{sT1}, s2, 3"); g.e(f"s_mul_i32 s{sT1}, s{sT1}, 15360"); g.e(f"s_add_u32 s{sT0}, s{sT0}, s{sT1}")
        g.e(f"s_lshl_b32 s{sT1}, s{sNT}, 7"); g.e(f"s_add_u32 s{sT0}, s{sT0}, s{sT1}"); g.e(f"s_add_u32 s{sT0}, s{sT0}, {CSP}")
        g.e(f"s_cmp_lt_u32 s2, 240"); g.e(f"s_cselect_b32 s{sT0}, s{sT0}, {OOB}")
        g.e(f"v_cndmask_b32 {v(t0)}, {v(t1)}, {v(t0)}, s[{sM0}:{sM1}]")
        for i in range(4): g.e(f"buffer_store_dwordx4 {v(ACC0 + 4 * i, 4)}, {v(t0)}, {srd(sWS)}, s{sT0} offen offset:{32 * i} sc1", tag="csp")

    def p1(g, layer):
        A = g.A; t0, t1, t2 = vT; L = v(vLANE); P = 'ab'[layer]; cfg = g.cfg
        g.c(f"===== P1 layer {layer}: LN + QKV (16x16x32, wave = head) + attention =====")
        def acc(m, b): return BIG + {'q': -4, 'k': 16, 'v': 36}[m] + 4 * b
        XF = [184, 204]; WF = [224, 236]; XA = 248
        first = layer == 0
        blocks = [1, 2, 3, 4, 0] if first else [1, 2, 3, 4]
        def wdst(m, s_):
            if first or m == 'q': return ('v', WF[s_ & 1] + 4 * 'qkv'.index(m))
            return ('a', (0 if m == 'k' else 64) + 4 * s_)
        R = lambda k, n, c=1: (v if k == 'v' else a)(n, c)
        def rd_w(m, s_, e_):
            u = f"{P}W{m}_{s_}"; r, imm = g.ldsref(vWR[e_], g.slot[u] * 4096); k, n = wdst(m, s_)
            g.e(f"ds_read_b64_tr_b16 {R(k, n + 2 * e_, 2)}, {v(r)} offset:{imm}", tag=u)
            if e_: g.release(u)
        def rd_x(b, s_):
            d = XF[s_ & 1] + 4 * b
            if first:
                r, imm = XA + (s_ & 3) + 4 * (b >> 2), (b & 3) * 16384 + (s_ >> 2) * 256
                g.e(f"ds_read_b128 {v(d, 4)}, {v(r)} offset:{imm}", tag="x0_0")
            else:
                u = f"{P}1X_{s_}"
                g.e(f"ds_read_b128 {v(d, 4)}, {v(vXR[0])} offset:{g.slot[u] * 4096 + (b - 1) * 256}", tag=u)
        vSA = TMP + 8; XS = [TMP, TMP + 4]; vA = TMP + 9; vB = TMP + 10
        def rd_s(s_):
            u = f"{P}1X_{s_}"
            g.e(f"ds_read_b128 {v(XS[s_ & 1], 4)}, {v(vSA)} offset:{g.slot[u] * 4096}", tag=u); g.release(u)
        def reads(s_):
            l = [lambda: rd_w('q', s_, 0), lambda: rd_w('q', s_, 1), lambda: rd_x(1, s_), lambda: rd_w('k', s_, 0), lambda: rd_w('k', s_, 1),
                 lambda: rd_w('v', s_, 0), lambda: rd_w('v', s_, 1)]
            l += [(lambda b=b: rd_x(b, s_)) for b in blocks[1:]]
            if not first: l.append(lambda: rd_s(s_))
            return l
        def units(s_): return [f"{P}W{m}_{s_}" for m in 'qkv'] + ([] if first else [f"{P}1X_{s_}"])
        def dots(x, n):
            for r in range(n):
                g.e(f"v_dot2_f32_bf16 {v(vS1)}, {v(x + r)}, s{sONES}, {v(vS1)}")
                g.e(f"v_dot2_f32_bf16 {v(vS2)}, {v(x + r)}, {v(x + r)}, {v(vS2)}")
        def reduce_stats():
            g.e(f"v_permlane32_swap_b32 {v(vS1)}, {v(vS2)}")
            g.e(f"v_add_f32 {v(t0)}, {v(vS1)}, {v(vS2)}")
            g.e(f"v_mov_b32 {v(t1)}, {v(t0)}")
            g.e(f"v_permlane16_swap_b32 {v(t0)}, {v(t1)}")
            g.e(f"v_add_f32 {v(t0)}, {v(t0)}, {v(t1)}")
            g.e(f"v_mov_b32 {v(vS1)}, 0"); g.e(f"v_mov_b32 {v(vS2)}, 0")
        def mu_r(addr):
            g.e(f"v_mul_f32 {v(t0)}, {fl(-1.0 / 512)}, {v(t0)}")
            g.e(f"v_mul_f32 {v(t1)}, {fl(1.0 / 512)}, {v(t1)}")
            g.e(f"v_fma_f32 {v(t1)}, -{v(t0)}, {v(t0)}, {v(t1)}")
            g.e(f"v_max_f32 {v(t1)}, 0, {v(t1)}")
            g.e(f"v_add_f32 {v(t1)}, {fl(EPS)}, {v(t1)}")
            g.e(f"v_rsq_f32 {v(t1)}, {v(t1)}")
            g.e(f"ds_write_b32 {v(addr)}, {v(t0)} offset:{NM - MISC}")
            g.e(f"ds_write_b32 {v(addr)}, {v(t1)} offset:{RR - MISC}")
        def own_stats():
            reduce_stats()
            g.e(f"v_mov_b32 {v(t1)}, {v(t0)}")
            g.e(f"v_permlane32_swap_b32 {v(t0)}, {v(t1)}")
            mu_r(vA)
        def halo_partial():
            reduce_stats()
            g.e(f"v_lshrrev_b32 {v(t1)}, 5, {L}"); g.e(f"v_lshl_add_u32 {v(t1)}, {v(t1)}, 6, {v(vB)}")
            g.e(f"s_lshl_b32 s{sT0}, s{sW}, 7"); g.e(f"v_add_u32 {v(t1)}, s{sT0}, {v(t1)}")
            g.e(f"ds_write_b32 {v(t1)}, {v(t0)} offset:{HS - MISC}")
        g.e(f"v_and_b32 {v(vB)}, 15, {L}"); g.e(f"v_lshlrev_b32 {v(vB)}, 2, {v(vB)}"); g.e(f"v_add_u32 {v(vB)}, {MISC}, {v(vB)}")
        g.e(f"s_lshl_b32 s{sT0}, s{sW}, 6"); g.e(f"s_add_u32 s{sT0}, s{sT0}, 64"); g.e(f"v_add_u32 {v(vA)}, s{sT0}, {v(vB)}")
        HB = ACC1
        GS = 2
        def grp(s_): return [u for k in range(s_, min(16, s_ + GS)) for u in units(k)]
        state = dict(pub=False)
        def after_barrier():
            if first and not state['pub'] and state.get('cs') and not any(o['tag'] == 'csp' for o in A.vm):
                state['pub'] = True
                lab = g.wave_begin(2)
                A.raw(f"s_lshl_b32 s{sT0}, s{sC}, 3"); A.raw(f"s_add_u32 s{sT0}, s{sT0}, s{sJ}")
                A.raw(f"v_mov_b32 {v(t0)}, s{sMYB}"); A.raw(f"v_mov_b32 {v(t1)}, 0"); A.raw("s_mov_b64 exec, 1")
                A.raw(f"buffer_store_byte {v(t0)}, {v(t1)}, {srd(sDBG)}, s{sT0} offen sc1"); A.raw("s_mov_b64 exec, -1")
                g.opt_end(lab)
        if first:
            g.barrier(extra_tags=["x0"]); g.now = max(g.now, g.comp["x0"])
            g.stamp("x_landed")
            g.e(f"s_add_u32 s{sT0}, s{sW}, 1"); g.e(f"s_lshl_b32 s{sT0}, s{sT0}, 14")
            for k in range(4): g.e(f"v_add_u32 {v(TMP + k)}, s{sT0}, {v(XA + k)}")
            for s_ in range(16): g.e(f"ds_read_b128 {v(BIG + 4 * s_, 4)}, {v(TMP + (s_ & 3))} offset:{256 * (s_ >> 2)}", tag="x0_0")
            g.fstamp('xs_rd'); dots(BIG, 64); g.fstamp('xs_dots'); own_stats(); g.fstamp('xs_own')
            g.e(f"s_lshl_b32 s{sT0}, s{sW}, 8")
            for i in range(4):
                g.e(f"v_add_u32 {v(TMP + i)}, s{sT0}, {v(XA + i)}")
                g.e(f"ds_read_b128 {v(HB + 4 * i, 4)}, {v(TMP + i)}", tag="x0_0")
            g.e(f"v_and_b32 {v(t2)}, 31, {L}"); g.e(f"v_lshl_add_u32 {v(t2)}, s{sTB}, 5, {v(t2)}")
            g.e(f"v_add_u32 {v(t2)}, 16, {v(t2)}"); g.e(f"v_lshlrev_b32 {v(t2)}, 10, {v(t2)}")
            g.e(f"v_lshrrev_b32 {v(t1)}, 5, {L}"); g.e(f"v_lshl_add_u32 {v(t2)}, {v(t1)}, 3, {v(t2)}")
            g.e(f"s_lshl_b32 s{sT0}, s{sJ}, 1"); g.e(f"s_add_u32 s{sT0}, s{sT0}, s{sNT}"); g.e(f"s_lshl_b32 s{sT0}, s{sT0}, 2")
            g.e(f"v_and_b32 {v(t1)}, 15, {L}"); g.e(f"v_xor_b32 {v(t1)}, s{sT0}, {v(t1)}")
            for i in range(4):
                g.e(f"v_xor_b32 {v(TMP + 4)}, {i}, {v(t1)}"); g.e(f"v_lshl_add_u32 {v(TMP + 4)}, {v(TMP + 4)}, 4, {v(t2)}")
                g.e(f"ds_read_b64 {v(ACC0 + 2 * i, 2)}, {v(TMP + 4)}")
            dots(HB, 16); halo_partial()
            for i in range(8):
                g.e(f"v_lshlrev_b32 {v(RES + 2 * i)}, 16, {v(ACC0 + i)}"); g.e(f"v_and_b32 {v(RES + 2 * i + 1)}, 0xffff0000, {v(ACC0 + i)}")
            g.stamp("x_stats")
            g.barrier(grp(0))
        else:
            g.e(f"s_lshl_b32 s{sT0}, s{sW}, 8"); g.e(f"v_add_u32 {v(vSA)}, s{sT0}, {v(vXR[0])}")
            g.barrier(grp(0))
            lab = g.wave_begin(0)
            A.raw(f"v_mov_b32 {v(t0)}, 1"); A.raw(f"v_mov_b32 {v(t1)}, {HFLAG}"); A.raw("s_mov_b64 exec, 1")
            A.raw(f"buffer_store_dword {v(t0)}, {v(t1)}, {srd(sWS)}, s{sFLAG} offen sc1"); A.raw("s_mov_b64 exec, -1")
            g.opt_end(lab)
        for r in reads(0): r()
        w0c = [f"s_cmp_eq_u32 s{sC}, 0", f"s_cselect_b32 s{sT0}, 1, s{sW}", f"s_cmp_lg_u32 s{sT0}, 0", "s_cbranch_scc1"]
        for s_ in range(16):
            nxt = []
            if s_ + 1 < 16:
                nxt = reads(s_ + 1)
                if (s_ + 1) % GS == 0:
                    ex = ["cs_%d" % u for u in range(4)] if first and s_ + 1 >= cfg['cs_at'] and not state.get('cs') else []
                    nxt = [lambda s_=s_, ex=ex: (g.auto(8), g.barrier(grp(s_ + 1) + ex), after_barrier())] + nxt
            jobs = [(m, b) for b in blocks for m in 'qkv' if not (m == 'q' and b == 0)]
            for n_, (m, b) in enumerate(jobs):
                k, n = wdst(m, s_)
                cc = "0" if s_ == 0 else v(acc(m, b), 4)
                g.e(f"v_mfma_f32_16x16x32_bf16 {v(acc(m, b), 4)}, {R(k, n, 4)}, {v(XF[s_ & 1] + 4 * b, 4)}, {cc}")
                if n_ >= 1 and nxt: nxt.pop(0)()
                if n_ % 3 == 2: g.auto(1)
            while nxt: nxt.pop(0)()
            if not first: dots(XS[s_ & 1], 4)
            if first and not state.get('cs') and "cs_3" in g.visible:
                g.colsum_strip(); state['cs'] = True
            sub = lambda mul, cs: [f"s_mul_i32 s{sT0}, s2, {mul}", f"s_mul_i32 s{sT1}, s{sJ}, {cs}", f"s_sub_u32 s{sT0}, s{sT0}, s{sT1}"]
            if first and s_ == cfg['touch1']:
                g.touch(sWO, 16, sub(2048, 128), 0); g.touch(sW2, 16, sub(2048, 128), 1)
                g.touch(sWS, 64, [f"s_mov_b32 s{sT0}, s{sSTB}"], 2); g.touch(sWS, 64, [f"s_mov_b32 s{sT0}, s{sSTA}"], 3)
            if first and s_ == cfg['touch2']:
                g.touch(sW4, 56, sub(7168, 128), 1)
                g.touch(sWS, 8, [f"s_lshl_b32 s{sT0}, s{sJ}, 10", f"s_add_u32 s{sT0}, s{sT0}, s{sSTT}"], 2)
            if first and s_ == cfg['chk_at']:
                lab = g.wave_begin(0)
                g.e(f"buffer_load_dword {v(vCHK)}, {v(vL4)}, {srd(sDBG)}, 0 offen sc1")
                g.opt_end(lab)
            if first and s_ == cfg['chk_at'] + 1:
                assert state['pub']
                lab = g.wave_begin(0)
                A.raw(f"s_mov_b32 s{sT1}, 0x80808080")
                g.poll(f"buffer_load_dword {v(vCHK)}, {v(vL4)}, {srd(sDBG)}, 0 offen sc1",
                       [f"v_and_b32 {v(t2)}, s{sT1}, {v(vCHK)}", f"v_cmp_ne_u32 vcc, s{sT1}, {v(t2)}"], preloaded=True)
                A.raw(f"s_mul_i32 s{sT0}, s{sMYB}, 0x01010101")
                A.raw(f"v_cmp_eq_u32 vcc, s{sT0}, {v(vCHK)}")
                A.raw(f"s_lshl_b32 s{sT0}, s{sC}, 1")
                A.raw(f"s_lshr_b64 s[{sM0}:{sM1}], vcc, s{sT0}")
                A.raw(f"s_and_b32 s{sT0}, s{sM0}, 3"); A.raw(f"s_cmp_eq_u32 s{sT0}, 3")
                A.raw(f"s_cselect_b32 s{sMODE}, {0 if cfg.get('slow') else 1}, 0")
                g.opt_end(lab)
            if first and s_ == cfg['chk_at'] + 2 + (cfg['chk_at'] + 1 & 1):
                assert state['pub']
                lab = g.opt_begin([f"s_cmp_gt_u32 s{sW}, 1", "s_cbranch_scc1"])
                A.raw(f"v_lshlrev_b32 {v(t0)}, 4, v0")
                A.raw(f"s_mul_i32 s{sT0}, s{sJ}, 896"); A.raw(f"s_add_u32 s{sT0}, s{sT0}, {8192 - 1024}")
                A.raw(f"v_add_u32 {v(t1)}, s{sT0}, {v(t0)}")
                A.raw(f"v_and_b32 {v(t2)}, 0xf0, {v(t0)}"); A.raw(f"v_lshrrev_b32 {v(t0)}, 4, v0")
                A.raw(f"v_lshl_add_u32 {v(t2)}, {v(t0)}, 11, {v(t2)}")
                A.raw(f"s_lshl_b32 s{sT0}, s{sJ}, 8"); A.raw(f"v_add_u32 {v(t2)}, s{sT0}, {v(t2)}")
                A.raw(f"s_cmp_eq_u32 s{sW}, 0"); A.raw(f"s_cselect_b64 s[{sM0}:{sM1}], -1, 0")
                A.raw(f"v_cndmask_b32 {v(t0)}, {v(t1)}, {v(t2)}, s[{sM0}:{sM1}]")
                for q in range(4):
                    A.raw(f"s_mov_b32 s{sT0}, {CSP + 15360 * q}")
                    g.e(f"buffer_load_dwordx4 {v(ACC0 + 4 * q, 4)}, {v(t0)}, {srd(sWS)}, s{sT0} offen sc1")
                g.opt_end(lab)
                state['csld'] = True
            if not first and s_ == cfg['halo_at']:
                lab = g.opt_begin(w0c)
                A.raw(f"v_add_u32 {v(t1)}, {HFLAG - 128}, {v(vFL)}")
                g.e(f"buffer_load_dword {v(vCHK)}, {v(t1)}, {srd(sWS)}, 0 offen sc1")
                g.opt_end(lab)
            if not first and s_ == cfg['halo_at'] + 1:
                lab = g.opt_begin(w0c)
                A.raw(f"v_add_u32 {v(t1)}, {HFLAG - 128}, {v(vFL)}")
                g.poll(f"buffer_load_dword {v(vCHK)}, {v(t1)}, {srd(sWS)}, 0 offen sc1", [f"v_cmp_ne_u32 vcc, 1, {v(vCHK)}"], preloaded=True)
                g.opt_end(lab)
            if not first and s_ == cfg['halo_at'] + 2 + (cfg['halo_at'] + 1 & 1):
                g.Q[0:0] = [dict(name=f"halo_{u}", voff=vXD, srd=sWS, sbase=sHXS, goff=u * 4096, aux="sc1", allowed={u}) for u in range(4)]
            if s_ == cfg.get('t3_at', 10):
                g.touch3(sWO, 16, 1024, 0); g.touch3(sW1, 16, 1024, 1); g.touch3(sW2, 16, 1024, 2)
            if s_ == 13:
                for u in range(16): g.Q.append(g.uW('o', u, P, allowed=set(range(20, NSLOT)) if first else RING))
                for u in range(16): g.Q.append(g.uW('1', u, P, allowed=RING))
        g.stamp(f"p1_{layer}_main")
        ok = g.budget(cfg['attn_dma'])
        if first:
            assert state.get('csld')
            lab = g.opt_begin([f"s_cmp_gt_u32 s{sW}, 1", "s_cbranch_scc1"])
            for h in (0, 2):
                g.e(f"v_pk_add_f32 {v(ACC0 + h, 2)}, {v(ACC0 + h, 2)}, {v(ACC0 + 4 + h, 2)}")
                g.e(f"v_pk_add_f32 {v(ACC0 + 8 + h, 2)}, {v(ACC0 + 8 + h, 2)}, {v(ACC0 + 12 + h, 2)}")
                g.e(f"v_pk_add_f32 {v(ACC0 + h, 2)}, {v(ACC0 + h, 2)}, {v(ACC0 + 8 + h, 2)}")
            A.raw(f"v_lshlrev_b32 {v(t0)}, 4, v0"); A.raw(f"v_add_u32 {v(t0)}, {CST}, {v(t0)}")
            A.raw(f"ds_write_b128 {v(t0)}, {v(ACC0, 4)}")
            A.raw("s_waitcnt lgkmcnt(0)")
            g.opt_end(lab)
            for s_ in range(20): g.release(f"x0_{s_}")
        else:
            own_stats()
            hn = [f"halo_{u}" for u in range(4)]
            g.barrier(hn)
            g.stamp(f"p1_{layer}_haloin")
            g.e(f"v_and_b32 {v(t0)}, 15, {L}"); g.e(f"v_lshlrev_b32 {v(vXR[1])}, 4, {v(t0)}")
            g.e(f"v_lshrrev_b32 {v(t1)}, 4, {L}"); g.e(f"v_lshl_add_u32 {v(vXR[1])}, {v(t1)}, 8, {v(vXR[1])}")
            g.e(f"s_lshl_b32 s{sT0}, s{sW}, 12"); g.e(f"v_add_u32 {v(vSA)}, s{sT0}, {v(vXR[1])}")
            for i in range(4): g.e(f"ds_read_b128 {v(HB + 4 * i, 4)}, {v(vSA)} offset:{i * 1024}", tag="halo_0")
            def rdh(s_): g.e(f"ds_read_b128 {v(XF[0] + 4 * (s_ % 8), 4)}, {v(vXR[1])} offset:{s_ * 1024}", tag="halo_0")
            for s_ in range(6): rdh(s_)
            dots(HB, 16); halo_partial()
            for s_ in range(16):
                if s_ + 6 < 16: rdh(s_ + 6)
                for m in 'kv':
                    cc = "0" if s_ == 0 else v(acc(m, 0), 4)
                    g.e(f"v_mfma_f32_16x16x32_bf16 {v(acc(m, 0), 4)}, {a(wdst(m, s_)[1], 4)}, {v(XF[0] + 4 * (s_ % 8), 4)}, {cc}")
                g.auto(1, ok)
            for u in hn: g.release(u)
        g.barrier(lds_all=True)
        g.stamp(f"p1_{layer}_halo")
        NMB = HB; CS = WB
        g.e(f"v_add_u32 {v(vSA)}, {HS - MISC}, {v(vB)}")
        for i in range(4): g.e(f"ds_read2_b32 {v(HB + 8 + 2 * i, 2)}, {v(vSA)} offset0:{32 * i} offset1:{32 * i + 16}")
        for b in range(1, 5): g.e(f"ds_read_b32 {v(NMB + b)}, {v(vB)} offset:{NM - MISC + 64 * b}")
        g.e(f"v_and_b32 {v(t2)}, 48, {L}"); g.e(f"s_lshl_b32 s{sT0}, s{sW}, 6"); g.e(f"s_add_u32 s{sT0}, s{sT0}, {CST}"); g.e(f"v_add_u32 {v(t2)}, s{sT0}, {v(t2)}")
        for mi in range(3): g.e(f"ds_read_b128 {v(CS + 4 * mi, 4)}, {v(t2)} offset:{256 * mi}")
        g.auto(2, ok)
        SCR = 4 * 4096; QO, KO, VO = 0, 2048, 4608
        vQ, vV, vK = vA, vXR[1], vXR[2]
        g.e(f"s_mul_i32 s{sT3}, s{sW}, 10240"); g.e(f"s_add_u32 s{sT3}, s{sT3}, {SCR}")
        g.e(f"v_and_b32 {v(t2)}, 15, {L}"); g.e(f"v_lshlrev_b32 {v(t2)}, 4, {v(t2)}"); g.e(f"v_add_u32 {v(t2)}, s{sT3}, {v(t2)}")
        g.e(f"v_lshrrev_b32 {v(t1)}, 4, {L}"); g.e(f"v_mul_u32_u24 {v(vV)}, 1280, {v(t1)}"); g.e(f"v_add_u32 {v(vV)}, {v(vV)}, {v(t2)}")
        g.e(f"v_bfe_u32 {v(t1)}, {L}, 4, 1"); g.e(f"v_lshl_add_u32 {v(t2)}, {v(t1)}, 3, {v(t2)}")
        g.e(f"v_lshrrev_b32 {v(t1)}, 5, {L}")
        g.e(f"v_mul_u32_u24 {v(vK)}, 1280, {v(t1)}"); g.e(f"v_add_u32 {v(vK)}, {v(vK)}, {v(t2)}")
        g.e(f"v_lshl_add_u32 {v(vQ)}, {v(t1)}, 10, {v(t2)}")
        def fix(m, b):
            r = acc(m, b); cs = CS + 4 * 'qkv'.index(m); o, bit = g.bc(NMB + b)
            for h in (0, 2):
                g.e(f"v_pk_fma_f32 {v(r + h, 2)}, {v(cs + h, 2)}, {o}, {v(r + h, 2)} op_sel:[0,{bit},0] op_sel_hi:[1,{bit},1]")
            if m != 'v':
                g.e(f"v_cvt_pk_bf16_f32 {v(r)}, {v(r)}, {v(r + 1)}"); g.e(f"v_cvt_pk_bf16_f32 {v(r + 1)}, {v(r + 2)}, {v(r + 3)}")
            if m == 'q': g.e(f"ds_write_b64 {v(vQ)}, {v(r, 2)} offset:{QO + (b - 1) * 256}")
            if m == 'k': g.e(f"ds_write_b64 {v(vK)}, {v(r, 2)} offset:{KO + b * 256}")
            if m == 'v': g.e(f"ds_write_b128 {v(vV)}, {v(r, 4)} offset:{VO + b * 256}")
            g.auto(1, ok)
        g.fstamp('at_setup')
        for b in (1, 2, 3, 4): fix('q', b)
        for b in (1, 2, 3, 4): fix('k', b)
        g.e(f"v_pk_add_f32 {v(HB + 8, 2)}, {v(HB + 8, 2)}, {v(HB + 10, 2)}")
        g.e(f"v_pk_add_f32 {v(HB + 12, 2)}, {v(HB + 12, 2)}, {v(HB + 14, 2)}")
        g.e(f"v_add_f32 {v(t0)}, {v(HB + 8)}, {v(HB + 12)}")
        g.e(f"v_add_f32 {v(t1)}, {v(HB + 9)}, {v(HB + 13)}")
        mu_r(vB)
        g.e(f"v_mov_b32 {v(NMB)}, {v(t0)}")
        fix('k', 0)
        g.fstamp('at_fixqk')
        vR = vB; vL = vQ
        g.e(f"v_lshlrev_b32 {v(vL)}, 4, {L}"); g.e(f"v_add_u32 {v(vL)}, s{sT3}, {v(vL)}")
        g.e(f"v_add_u32 {v(vR)}, {RR}, {v(vL4)}")
        QR, KR, RW, SL, OA = 48, 184, 56, 96, 104
        for h in (0, 1): g.e(f"ds_read_b128 {v(QR + 4 * h, 4)}, {v(vL)} offset:{QO + 1024 * h}")
        def rdk(w_):
            for h in (0, 1): g.e(f"ds_read_b128 {v(KR + 8 * w_ + 4 * h, 4)}, {v(vL)} offset:{KO + 1280 * h + (16 - 2 * w_) * 16}")
        for w_ in range(4): rdk(w_)
        for b in (1, 2, 3, 4, 0): fix('v', b)
        for w_ in range(4, 8): rdk(w_)
        for p in range(4): g.e(f"ds_read2_b32 {v(RW + 2 * p, 2)}, {v(vR)} offset0:{16 - 4 * p} offset1:{14 - 4 * p}")
        g.fstamp('at_rdk')
        VR = [128, 144, 160, 64]
        def rdv(w_):
            for q in range(4): g.e(f"ds_read_b128 {v(VR[w_ % 4] + 4 * q, 4)}, {v(vL)} offset:{VO + 1280 * q + (16 - 2 * w_) * 16}")
        for w_ in range(0, 8, 2):
            for r in range(8):
                for ww in (w_, w_ + 1):
                    cc = "0" if r == 0 else v(SL + ww)
                    g.e(f"v_dot2_f32_bf16 {v(SL + ww)}, {v(QR + r)}, {v(KR + 8 * ww + r)}, {cc}")
            if w_ >= 2: rdv(w_ // 2 - 1)
            g.auto(1, ok)
        g.fstamp('at_qk')
        for p in range(4): g.e(f"v_pk_mul_f32 {v(SL + 2 * p, 2)}, {v(SL + 2 * p, 2)}, {v(RW + 2 * p, 2)}")
        lab = g.opt_begin([f"s_cmp_lg_u32 s{sC}, 0", "s_cbranch_scc1"])
        A.raw(f"v_mov_b32 {v(t0)}, {fl(-1e30)}")
        for w_ in range(1, 8):
            A.raw(f"s_mov_b64 s[{sM0}:{sM1}], {(1 << (2 * w_)) - 1}")
            A.raw(f"v_cndmask_b32 {v(SL + w_)}, {v(SL + w_)}, {v(t0)}, s[{sM0}:{sM1}]")
        g.opt_end(lab)
        g.e(f"v_max3_f32 {v(t0)}, {v(SL)}, {v(SL + 1)}, {v(SL + 2)}")
        g.e(f"v_max3_f32 {v(t1)}, {v(SL + 3)}, {v(SL + 4)}, {v(SL + 5)}")
        g.e(f"v_max3_f32 {v(t0)}, {v(t0)}, {v(SL + 6)}, {v(SL + 7)}")
        cq, nmx = TMP + 12, TMP + 13
        g.e(f"v_mul_f32 {v(cq)}, {fl(0.25 * math.log2(math.e))}, {v(RW)}")
        g.e(f"v_max_f32 {v(t0)}, {v(t0)}, {v(t1)}")
        g.e(f"v_mul_f32 {v(nmx)}, -{v(t0)}, {v(cq)}")
        for p in range(4):
            g.e(f"v_pk_fma_f32 {v(SL + 2 * p, 2)}, {v(SL + 2 * p, 2)}, {v(cq, 2)}, {v(cq, 2)} op_sel:[0,0,1] op_sel_hi:[1,0,1]")
        for w_ in range(8): g.e(f"v_exp_f32 {v(SL + w_)}, {v(SL + w_)}")
        g.auto(1, ok)
        g.e(f"v_pk_add_f32 {v(cq, 2)}, {v(SL, 2)}, {v(SL + 2, 2)}")
        g.e(f"v_pk_add_f32 {v(cq + 2, 2)}, {v(SL + 4, 2)}, {v(SL + 6, 2)}")
        g.e(f"v_pk_add_f32 {v(cq, 2)}, {v(cq, 2)}, {v(cq + 2, 2)}")
        g.e(f"v_add_f32 {v(cq)}, {v(cq)}, {v(cq + 1)}")
        g.e(f"v_rcp_f32 {v(cq)}, {v(cq)}")
        for p in range(4): g.e(f"v_pk_mul_f32 {v(SL + 2 * p, 2)}, {v(SL + 2 * p, 2)}, {v(RW + 2 * p, 2)}")
        for p in range(4): g.e(f"v_pk_mul_f32 {v(SL + 2 * p, 2)}, {v(SL + 2 * p, 2)}, {v(cq, 2)} op_sel_hi:[1,0]")
        g.fstamp('at_sm')
        for w_ in range(8):
            if w_ + 3 < 8: rdv(w_ + 3)
            o, bit = g.bc(SL + w_)
            for q in range(8):
                if w_ == 0: g.e(f"v_pk_mul_f32 {v(OA + 2 * q, 2)}, {v(VR[w_ % 4] + 2 * q, 2)}, {o} op_sel:[0,{bit}] op_sel_hi:[1,{bit}]")
                else: g.e(f"v_pk_fma_f32 {v(OA + 2 * q, 2)}, {v(VR[w_ % 4] + 2 * q, 2)}, {o}, {v(OA + 2 * q, 2)} op_sel:[0,{bit},0] op_sel_hi:[1,{bit},1]")
            if w_ < 4: g.auto(1, ok)
        g.fstamp('at_pv')
        g.pack16(OA, QR)
        g.e(f"buffer_store_dwordx4 {v(QR, 4)}, {v(vSTO)}, {srd(sWS)}, s{sSTA} offen", tag="st")
        g.e(f"buffer_store_dwordx4 {v(QR + 4, 4)}, {v(vSTO)}, {srd(sWS)}, s{sSTA} offen offset:1024", tag="st")
        g.stamp(f"p1_{layer}_attn")
        for u in g.Q:
            if u['name'].startswith(f"{P}Wo"): u['allowed'] = RING
        def mid():
            g.setup_wr(32, False); g.setup_xr32()
        return g.handoff(6 * layer + 1, ["st"], mid)

    def small(g, layer, which):
        A = g.A; P = 'ab'[layer]; t0, t1, t2 = vT; cfg = g.cfg
        mat = {2: 'o', 3: '1', 4: '2'}[which]; xb = {2: sRA, 3: sRB, 4: sRA}[which]
        g.c(f"===== P{which} layer {layer} =====")
        XP = f"{P}{which}"
        if which == 4:
            assert all(s_ in g.free for s_ in range(17)), g.free
            for s_ in range(17): g.free.remove(s_); g.slot[f"{XP}pad_{s_}"] = s_
            xs = [g.uX(xb, u, XP, lds=u * 4 * 1088 + 32) for u in range(16)]
        else:
            xs = [g.uX(xb, u, XP, allowed={u}) for u in range(16)]
        if which == 3: xs[10:10] = g.uS(XP)
        mine = [u for u in g.Q if u['name'].startswith(f"{P}W{mat}_")]; rest = [u for u in g.Q if u not in mine]
        q = []
        for x in xs:
            if x['name'].startswith(f"{XP}X_"):
                for u in mine:
                    if u['name'] == f"{P}W{mat}_{x['name'].split('_')[1]}": q.append(u)
            q.append(x)
        g.Q = q + rest
        for m, n in {2: [('2', 16)], 3: [('3a', 16)], 4: [('3b', 16), ('3c', 16), ('3d', 8)]}[which]:
            for u in range(n): g.Q.append(g.uW(m, u, P, allowed=RING17 if m in ('2', '3a', '3b') else None))
        H = TMP
        hload = f"buffer_load_dwordx4 {v(H, 4)}, {v(vHHLD)}, {srd(sWS)}, s{sT3} offen sc1"
        if which == 4:
            g.pump(cfg.get('hh_after', 2))
            g.e(f"s_mov_b32 s{sT3}, {layer * 0x10000}"); g.e(hload)
            g.pump(cfg['xfirst'] - cfg.get('hh_after', 2))
        else: g.pump(cfg['xfirst'])
        dsh = [1, -1, 2, -2]
        steps = []
        for s_ in range(32):
            wu = f"{P}W{mat}_{s_ // 2}"; xu = f"{XP}X_{s_ // 2}"
            st = dict(w=(vWR, lambda wu=wu, s_=s_: g.slot[wu] * 4096 + (s_ & 1) * 2048), wu=wu, xu=xu, rel=[])
            if which == 4: st['x'] = ('lds', lambda s_=s_: s_ * 2176 + 32 - 16 * dsh[s_ // 8], None); st['xu'] = f"{XP}pad_0"
            else: st['x'] = ('lds', lambda xu=xu, s_=s_: g.slot[xu] * 4096 + (s_ & 1) * 2048, None)
            if s_ & 1:
                st['rel'].append(wu)
                if which != 4: st['rel'].append(xu)
            if which == 4 and s_ == 31: st['rel'] += [f"{XP}pad_{k}" for k in range(17)]
            steps.append(st)
        gs = cfg.get('gs', [0, 8, 16, 24, 28])
        groups = {}
        for n_, s0 in enumerate(gs):
            s1 = gs[n_ + 1] if n_ + 1 < len(gs) else 32
            groups[s0] = [f"{P}W{mat}_{u}" for u in range(s0 // 2, s1 // 2)] + [f"{XP}X_{u}" for u in range(s0 // 2, s1 // 2)]
        pre_bar = None; fill = []; ff = 0; nf = 0
        if which == 4:
            def pre_bar(k):
                if k != 0: return
                g.poll(hload, [f"v_max_u32 {v(t0)}, {v(H)}, {v(H + 1)}", f"v_max3_u32 {v(t0)}, {v(t0)}, {v(H + 2)}, {v(H + 3)}",
                               f"v_cmp_eq_u32 vcc, -1, {v(t0)}"], preloaded=True)
                g.e(f"s_cmp_eq_u32 s{sTB}, 1"); g.e(f"s_cselect_b32 exec_lo, -1, 0xffff"); g.e("s_mov_b32 exec_hi, 0")
                g.e(f"ds_write_b128 {v(vHHW)}, {v(H, 4)}")
                g.e("s_mov_b64 exec, -1")
                A.wait_lg_all()
        if which == 3:
            s3 = min(s0 for s0 in gs if s0 >= 20)
            groups[s3] = groups[s3] + [f"{XP}S_0", f"{XP}S_1"]
            fill = g.stats_in(XP, True); ff = s3 - 2
            for i in range(4): fill.insert(0, lambda i=i: g.e(f"ds_read_b128 {v(BIG + 4 * i, 4)}, {v(vCSA)} offset:{768 + 32 * i}"))
            nf = -(-len(fill) // (32 - ff))
        acc = {2: RES, 3: ACC0, 4: ACC1}[which]
        mine_n = set(u['name'] for u in mine)
        g.gemm32(steps, groups, acc, which == 3, ok=g.budget(cfg['winA'], lambda u: bool(u.get('aux')) or u['name'] in mine_n),
                 pre_bar=pre_bar, fill=fill, fill_from=ff, nfill=nf)
        while fill: fill.pop(0)()
        g.stamp(f"p{which}_{layer}_mm")
        PK = XB
        if which == 3:
            for f in g.gelu_ops(ACC0, 16, None, None, PK, True, csbuf=BIG): f()
            for r in range(8): g.e(f"v_min_u32 {v(PK + r)}, -2, {v(PK + r)}")
        else: g.pack16(acc, PK)
        g.store_x(PK, {2: sSTB, 3: sSTA, 4: sSTB}[which], "st")
        if which == 3:
            g.e(f"s_add_u32 s{sT0}, s{sHHS}, {layer * 0x10000}")
            g.e(f"buffer_store_dwordx4 {v(PK, 4)}, {v(vHHST)}, {srd(sWS)}, s{sT0} offen sc1", tag="hh")
            g.e(f"buffer_store_dwordx4 {v(PK + 4, 4)}, {v(vHHST)}, {srd(sWS)}, s{sT0} offen offset:32 sc1", tag="hh")
        else: g.stats_out(acc)
        g.stamp(f"p{which}_{layer}_epi")
        def mid():
            if which == 2:
                g.setup_wr(32, True)
                for k in range(3):
                    g.touch(sWS, 64 if k < 2 else 32, [f"s_mul_i32 s{sT0}, s{sJ}, 20480", f"s_add_u32 s{sT0}, s{sT0}, {65536 + 8192 * k}", f"s_add_u32 s{sT0}, s{sT0}, s{sRA}"], k + 1)
            if which == 3:
                g.touch3(sW4, 56, 1024, 3)
                r = TMP + 14
                for q in range(8):
                    g.e(f"v_pk_fma_f32 {v(ACC1 + 2 * q, 2)}, {v(RES + 2 * q, 2)}, {v(r, 2)}, {v(r, 2)} op_sel:[0,0,1] op_sel_hi:[1,0,1]")
                g.setup_xr32(1088)
            if which == 4:
                for q in range(8): g.e(f"v_pk_add_f32 {v(RES + 2 * q, 2)}, {v(RES + 2 * q, 2)}, {v(ACC1 + 2 * q, 2)}")
                g.setup_xr32()
        return g.handoff(6 * layer + which, ["st"], mid)

    def p5(g, layer):
        A = g.A; P = 'ab'[layer]; t0, t1, t2 = vT; L = v(vLANE); cfg = g.cfg
        g.c(f"===== P5 layer {layer}: LN + W3 + gelu =====")
        XP = f"{P}5"
        xs = [g.uX(sRB, u, XP, allowed={u}) for u in range(16)]
        mine = [u for u in g.Q if u['name'].startswith(f"{P}W3a_")]; rest = [u for u in g.Q if u not in mine]
        q = []
        for x in xs:
            q += [u for u in mine if u['name'].split('_')[1] == x['name'].split('_')[1]] + [x]
        S = g.uS(XP)
        for u in S: u['allowed'] = None
        g.Q = q + S + rest
        for u in range(cfg['w4pre']): g.Q.append(g.uW('4', u, P))
        g.pump(cfg['xfirst'])
        PK = XB; vC3 = XB + 15
        g.e(f"s_lshl_b32 s{sT0}, s{sODD}, 1"); g.e(f"v_add_u32 {v(vC3)}, s{sT0}, {v(vCSA)}")
        fill = []
        for ci, ch in enumerate('abc'):
            acc = (ACC0, ACC1)[ci & 1]
            steps = []; groups = {}
            for s_ in range(32):
                wu = f"{P}W3{ch}_{s_ // 2}"; xu = f"{XP}X_{s_ // 2}"
                st = dict(w=(vWR, lambda wu=wu, s_=s_: g.slot[wu] * 4096 + (s_ & 1) * 2048), wu=wu, xu=xu, rel=[])
                if ci == 0: st['x'] = ('lds', lambda xu=xu, s_=s_: g.slot[xu] * 4096 + (s_ & 1) * 2048, BIG + 4 * s_)
                else: st['x'] = ('reg', BIG + 4 * s_)
                if s_ & 1:
                    st['rel'].append(wu)
                    if ci == 0: st['rel'].append(xu)
                steps.append(st)
            for s0 in range(0, 32, 8):
                groups[s0] = [f"{P}W3{ch}_{u}" for u in range(s0 // 2, s0 // 2 + 4)] + ([f"{XP}X_{u}" for u in range(s0 // 2, s0 // 2 + 4)] if ci == 0 else [])
            ff = 0
            if ci == 0:
                steps_last = 28
                groups[steps_last] = [f"{XP}S_0", f"{XP}S_1"]; fill = g.stats_in(XP, False); ff = steps_last - 2
            if ci == 2:
                ex = [g.alloc("ex0_" + P), g.alloc("ex1_" + P)]
                assert None not in ex
            g.gemm32(steps, groups, acc, True, fill=fill, nfill=-(-len(fill) // (31 - ff)), fill_from=ff)
            while fill: fill.pop(0)()
            if layer == 0 and ci == 2: g.touch3(sWQ, 48, 1024, 3)
            g.stamp(f"p5_{layer}_{ch}")
            fill = g.gelu_ops(acc, 16, vC3, 1024 + 256 * ci, PK, False)
            fill.append(lambda ci=ci: g.e(f"s_add_u32 s{sT3}, s{sH2F}, {ci * 8192}"))
            fill.append(lambda: g.store_x(PK, sT3, "st"))
        hreg = [[XB + 8, XB + 9, XB + 10], [XB + 11, XB + 12, XB + 13]]
        for e_ in (0, 1):
            d = hreg[e_][0]
            g.e(f"v_lshrrev_b32 {v(t0)}, 5, {L}"); g.e(f"v_bfe_u32 {v(t1)}, {L}, 2, 2")
            g.e(f"v_lshl_add_u32 {v(d)}, {v(t0)}, 2, {v(t1)}")
            if e_: g.e(f"v_add_u32 {v(d)}, 8, {v(d)}")
            g.e(f"v_lshlrev_b32 {v(d)}, 6, {v(d)}")
            g.e(f"v_bfe_u32 {v(t0)}, {L}, 4, 1"); g.e(f"v_lshl_add_u32 {v(d)}, {v(t0)}, 5, {v(d)}")
            g.e(f"v_and_b32 {v(t0)}, 3, {L}"); g.e(f"v_lshl_add_u32 {v(d)}, {v(t0)}, 3, {v(d)}")
            g.windows(hreg[e_])
        acc = ACC1; vE = XB + 14
        g.e(f"s_mul_i32 s{sT0}, s{sTB}, {(ex[1] - ex[0]) * 4096}"); g.e(f"s_add_u32 s{sT0}, s{sT0}, {ex[0] * 4096}")
        g.e(f"v_lshlrev_b32 {v(vE)}, 4, {L}"); g.e(f"v_add_u32 {v(vE)}, s{sT0}, {v(vE)}")
        npre = cfg.get('gelu_pre', 0)
        for _ in range(npre):
            fill.pop(0)(); g.auto(1)
        g.auto(8)
        g.barrier([f"{P}W3d_{u}" for u in range(8)])
        A.wait_lg_all()
        l1 = A.newlabel('NT1'); l2 = A.newlabel('NTE')
        g.e(f"s_cmp_lg_u32 s{sNT}, 0"); g.e(f"s_cbranch_scc1 {l1}")
        g.gid += 1
        keys = ('Q', 'free', 'slot', 'pend_free', 'visible', 'now', 'mfree', 'comp', 'fifo', 'flast')
        st0 = (copy.deepcopy(A.vm), copy.deepcopy(A.lg), {k: copy.deepcopy(getattr(g, k)) for k in keys})
        ends = []
        for nt in (0, 1):
            A.vm, A.lg = copy.deepcopy(st0[0]), copy.deepcopy(st0[1])
            for k in keys: setattr(g, k, copy.deepcopy(st0[2][k]))
            if nt: A.label(l1)
            A.begin_var(g.gid, nt, opt=False)
            steps = []
            for i in range(16):
                s_ = 16 * nt + i; wu = f"{P}W3d_{s_ // 4}"
                steps.append(dict(w=(hreg, lambda wu=wu, s_=s_: g.slot[wu] * 4096 + (s_ & 3) * 1024), wu=wu, x=('reg', BIG + 4 * s_), rel=[]))
            f2 = list(fill)
            g.gemm32(steps, {}, acc, True, fill=f2, nfill=-(-len(f2) // 16))
            while f2: f2.pop(0)()
            snd = acc + 8 * (1 - nt)
            g.e(f"ds_write_b128 {v(vE)}, {v(snd, 4)} offset:{2048 * nt}")
            g.e(f"ds_write_b128 {v(vE)}, {v(snd + 4, 4)} offset:{2048 * nt + 1024}")
            for r in range(8):
                if nt: g.e(f"v_mov_b32 {v(acc + r)}, {v(acc + 8 + r)}")
                else: g.now += 4
            A.wait_lg_all()
            if nt == 0: A.raw(f"s_branch {l2}")
            A.end_var()
            ends.append(([o['tag'] for o in A.vm], [u['name'] for u in g.Q]))
        assert ends[0] == ends[1]
        A.label(l2)
        for u in range(8): g.release(f"{P}W3d_{u}")
        g.barrier()
        g.stamp(f"p5_{layer}_d")
        g.e(f"s_xor_b32 s{sT0}, s{sNT}, 1"); g.e(f"s_lshl_b32 s{sT0}, s{sT0}, 11"); g.e(f"v_add_u32 {v(vE)}, s{sT0}, {v(vE)}")
        g.e(f"ds_read_b128 {v(acc + 8, 4)}, {v(vE)}", tag="ex0_" + P); g.e(f"ds_read_b128 {v(acc + 12, 4)}, {v(vE)} offset:1024", tag="ex0_" + P)
        g.release("ex0_" + P); g.release("ex1_" + P)
        g.e(f"s_lshl_b32 s{sT0}, s{sHALF}, 1"); g.e(f"s_lshl_b32 s{sT1}, s{sNT}, 6"); g.e(f"s_sub_u32 s{sT0}, s{sT0}, s{sT1}")
        g.e(f"v_add_u32 {v(vC3)}, s{sT0}, {v(vCSA)}")
        ops = g.gelu_ops(acc, 8, vC3, 1024, PK, True)
        ops.pop(0)(); ops.pop(0)()
        for q in range(4): g.e(f"v_pk_add_f32 {v(acc + 2 * q, 2)}, {v(acc + 2 * q, 2)}, {v(acc + 8 + 2 * q, 2)}")
        for f in ops: f()
        g.e(f"s_lshl_b32 s{sT0}, s{sNT}, 11"); g.e(f"s_sub_u32 s{sT3}, s{sH2H}, s{sT0}")
        g.e(f"buffer_store_dwordx4 {v(PK, 4)}, {v(vST)}, {srd(sWS)}, s{sT3} offen", tag="st")
        g.stamp(f"p5_{layer}_epi")
        return g.handoff(6 * layer + 5, ["st"])

    def p6(g, layer):
        A = g.A; P = 'ab'[layer]; t0, t1, t2 = vT; L = v(vLANE); cfg = g.cfg
        g.c(f"===== P6 layer {layer}: h2 @ W4 =====")
        XP = f"{P}6"
        pend = {u['name']: u for u in g.Q}
        q = []
        for u in range(56):
            q.append(g.uX(sRA, u, XP))
            nm = f"{P}W4_{u}"
            if nm in pend: q.append(pend[nm])
            elif u >= cfg['w4pre']: q.append(g.uW('4', u, P))
        g.Q = q
        if layer == 0:
            for s_ in range(16):
                for m in 'qkv': g.Q.append(g.uW(m, s_, 'b', allowed=RING))
        g.pump(8)
        steps = []; groups = {}
        for s_ in range(112):
            wu = f"{P}W4_{s_ // 2}"; xu = f"{XP}X_{s_ // 2}"
            steps.append(dict(w=(vWR, lambda wu=wu, s_=s_: g.slot[wu] * 4096 + (s_ & 1) * 2048), wu=wu, xu=xu,
                              x=('lds', lambda xu=xu, s_=s_: g.slot[xu] * 4096 + (s_ & 1) * 2048, None), rel=[wu, xu] if s_ & 1 else []))
        gs = list(range(0, 104, 8)) + [104, 108]
        for n_, s0 in enumerate(gs):
            s1 = gs[n_ + 1] if n_ + 1 < len(gs) else 112
            groups[s0] = [f"{P}W4_{u}" for u in range(s0 // 2, s1 // 2)] + [f"{XP}X_{u}" for u in range(s0 // 2, s1 // 2)]
        g.gemm32(steps, groups, RES, False, ok=g.budget(cfg['qkvA'], lambda u: bool(u.get('aux')) or 'W4' in u['name']))
        g.stamp(f"p6_{layer}_mm")
        PK = XB
        g.pack16(RES, PK)
        if layer == 1:
            g.e(f"v_and_b32 {v(t0)}, 31, {L}"); g.e(f"v_lshl_add_u32 {v(t0)}, s{sTB}, 5, {v(t0)}"); g.e(f"v_lshlrev_b32 {v(t0)}, 10, {v(t0)}")
            g.e(f"v_lshrrev_b32 {v(t1)}, 5, {L}"); g.e(f"v_lshl_add_u32 {v(t0)}, {v(t1)}, 4, {v(t0)}")
            g.e(f"s_lshl_b32 s{sT0}, s{sC}, 16"); g.e(f"s_lshl_b32 s{sT1}, s{sJ}, 7"); g.e(f"s_add_u32 s{sT0}, s{sT0}, s{sT1}")
            g.e(f"s_lshl_b32 s{sT1}, s{sNT}, 6"); g.e(f"s_add_u32 s{sT0}, s{sT0}, s{sT1}")
            for p in (0, 4):
                g.e(f"v_permlane32_swap_b32 {v(PK + p)}, {v(PK + p + 2)}"); g.e(f"v_permlane32_swap_b32 {v(PK + p + 1)}, {v(PK + p + 3)}")
                g.e(f"buffer_store_dwordx4 {v(PK + p, 4)}, {v(t0)}, {srd(sOUT)}, s{sT0} offen offset:{8 * p}")
            return g.finish()
        g.store_x(PK, sSTB, "st")
        g.e(f"buffer_store_dwordx4 {v(PK, 4)}, {v(vHXST)}, {srd(sWS)}, 0 offen sc1", tag="hx")
        g.e(f"buffer_store_dwordx4 {v(PK + 4, 4)}, {v(vHXST)}, {srd(sWS)}, 0 offen offset:512 sc1", tag="hx")
        g.stamp(f"p6_{layer}_epi")
        def mid():
            g.setup_wr(16, True)
            g.e(f"v_and_b32 {v(t0)}, 15, {L}"); g.e(f"v_lshlrev_b32 {v(vXR[0])}, 4, {v(t0)}")
            g.e(f"v_lshrrev_b32 {v(t1)}, 4, {L}"); g.e(f"v_lshl_add_u32 {v(vXR[0])}, {v(t1)}, 10, {v(vXR[0])}")
        if g.handoff(6, ["st"], mid): return True
        pend = {u['name']: u for u in g.Q}; q = []; lead = cfg['xlead']
        xs = [g.uX(sRB, u, 'b1', allowed={u}) for u in range(16)]
        for s_ in range(16 + lead):
            if s_ < 16: q.append(xs[s_])
            if s_ >= lead:
                for m in 'qkv':
                    if f"bW{m}_{s_ - lead}" in pend: q.append(pend[f"bW{m}_{s_ - lead}"])
        g.Q = q
        g.pump(8)
        return False

    def build(g):
        g.done = False
        g.prologue()
        t0, t1, _ = vT; L = v(vLANE)
        g.setup_wr(16, False)
        g.e(f"v_and_b32 {v(t0)}, 15, {L}"); g.e(f"v_lshrrev_b32 {v(t1)}, 4, {L}"); g.e(f"v_xor_b32 {v(t1)}, {v(t1)}, {v(t0)}")
        g.e(f"v_lshlrev_b32 {v(t0)}, 10, {v(t0)}")
        for k in range(4):
            g.e(f"v_xor_b32 {v(252 + k)}, {4 * k}, {v(t1)}"); g.e(f"v_lshl_add_u32 {v(248 + k)}, {v(252 + k)}, 4, {v(t0)}")
            g.e(f"v_add_u32 {v(252 + k)}, 0x10000, {v(248 + k)}")
        for layer in (0, 1):
            for f in (lambda: g.p1(layer), lambda: g.small(layer, 2), lambda: g.small(layer, 3), lambda: g.small(layer, 4), lambda: g.p5(layer), lambda: g.p6(layer)):
                if f(): break
            if g.done: break
        g.A.fix_hazards()
        if g.cfg.get('align', 1): g.al = align8(g.A, '.set CODE_BYTES, 0x12340\n', g.cfg.get('minrun', 5))
        body = g.A.text()
        hdr = open(os.path.join(os.path.dirname(__file__), "header.txt")).read()
        out = hdr + f"""; @launch grid=(256,1,1) block=(256,1,1) lds={LDS_BYTES}
.amdgcn_target "amdgcn-amd-amdhsa--gfx950"
.text
.globl {NAME}_kernel
.p2align 8
.type {NAME}_kernel,@function
{NAME}_kernel:
.set CODE_BYTES, L_END - {NAME}_kernel - 1024
""" + body + f"""L_END:
  s_endpgm
.section .rodata,"a"
.p2align 6
.amdhsa_kernel {NAME}_kernel
  .amdhsa_next_free_vgpr 512
  .amdhsa_next_free_sgpr 96
  .amdhsa_accum_offset 256
  .amdhsa_group_segment_fixed_size 0
  .amdhsa_kernarg_size 88
  .amdhsa_user_sgpr_count 2
  .amdhsa_user_sgpr_kernarg_segment_ptr 1
  .amdhsa_system_sgpr_workgroup_id_x 1
.end_amdhsa_kernel
"""
        return out


if __name__ == "__main__":
    import argparse, json
    ap = argparse.ArgumentParser()
    ap.add_argument("-o", default=f"cdna_kernels/{NAME}.s")
    ap.add_argument("--stop", type=int); ap.add_argument("--prof", action="store_true")
    ap.add_argument("--cfg", default="{}")
    x = ap.parse_args()
    g = Gen(stop=x.stop, prof=x.prof, cfg=json.loads(x.cfg))
    s = g.build(); open(x.o, "w").write(s)
    if x.prof: open(x.o[:-2] + ".stamps", "w").write("\n".join(g.stamps))
    print("wrote", x.o, len(s), "bytes,", len(g.A.L), "lines, model end", int(g.now), "align", getattr(g, 'al', None))
```

```python
import re
REG = re.compile(r'^(-?)(abs\()?([vas])(\d+|\[(\d+):(\d+)\])\)?$')
def regs_of(tok):
    tok = tok.strip()
    if tok in ('vcc',): return [('s','vcc_lo'),('s','vcc_hi')]
    if tok in ('vcc_lo','vcc_hi','m0','exec_lo','exec_hi'): return [('s',tok)]
    if tok == 'exec': return [('s','exec_lo'),('s','exec_hi')]
    m = REG.match(tok)
    if not m: return []
    k = m.group(3)
    if m.group(5) is not None: return [(k,i) for i in range(int(m.group(5)), int(m.group(6))+1)]
    return [(k,int(m.group(4)))]
TRANS = ('v_exp_f32','v_log_f32','v_rcp_f32','v_rsq_f32','v_sqrt_f32','v_sin_f32','v_cos_f32')
class I:
    __slots__=('text','op','defs','uses','kind','meta','cregs')
    def __init__(s, text, meta=None):
        s.text=text; s.meta=meta or {}; s.cregs=[]
        t=text.split(';')[0].strip()
        s.defs=[]; s.uses=[]
        if t.endswith(':') or t=='' or t.startswith('.'):
            s.op=''; s.kind='label' if t.endswith(':') else 'none'; return
        p=t.split(None,1); op=p[0]; s.op=op
        rest=p[1] if len(p)>1 else ''
        ops=[]; cur=''; d=0
        for ch in rest:
            if ch in '[(' : d+=1
            if ch in '])' : d-=1
            if ch==',' and d==0: ops.append(cur); cur=''
            else: cur+=ch
        if cur.strip(): ops.append(cur)
        mods=''
        if ops:
            l=ops[-1].strip().split(None,1); ops[-1]=l[0]; mods=l[1] if len(l)>1 else ''
        R=[regs_of(o) for o in ops]
        fl=lambda L:[x for y in L for x in y]
        if op.startswith('v_mfma'):
            s.kind='mfma'; s.defs=R[0]; s.uses=fl(R[1:]); s.cregs=R[3]
        elif op.startswith('v_permlane') :
            s.kind='valu'; s.defs=fl(R[:2]); s.uses=fl(R[:2])
        elif op.startswith('v_'):
            s.kind='valu'; s.defs=R[0]; s.uses=fl(R[1:])
            if op.startswith(('v_fmac','v_dot2c','v_writelane')) or 'dpp' in op or 'row_' in mods: s.uses+=R[0]
            if op.startswith('v_cndmask') and len(ops)==3: s.uses+=regs_of('vcc')
        elif op.startswith('ds_read') or op.startswith('ds_bpermute'):
            s.kind='ds'; s.defs=R[0]; s.uses=fl(R[1:])
        elif op.startswith('ds_'):
            s.kind='ds'; s.uses=fl(R)
        elif op.startswith(('buffer_load','global_load')):
            s.kind='vm'
            if re.search(r'\blds\b', mods): s.uses=fl(R)+[('s','m0')]; s.meta['dma']=1
            else: s.defs=R[0]; s.uses=fl(R[1:])
        elif op.startswith(('buffer_store','global_store')):
            s.kind='vm'; s.uses=fl(R); s.meta['store']=R[0] if op.startswith('buffer') else R[1]
        elif op.startswith(('buffer_inv','buffer_wbl2')):
            s.kind='vm'
        elif op.startswith(('s_load','s_memtime','s_memrealtime')):
            s.kind='smem'; s.defs=R[0]; s.uses=fl(R[1:])
        elif op.startswith(('s_cmp','s_waitcnt','s_barrier','s_branch','s_cbranch','s_nop','s_endpgm','s_sleep','s_setprio','s_bitcmp')):
            s.kind='salu'; s.uses=fl(R)
        elif op.startswith('s_'):
            s.kind='salu'; s.defs=R[0]; s.uses=fl(R[1:])
        else: raise ValueError(text)
    def states(s):
        if s.kind in ('label','none'): return 0
        if s.op=='s_nop': return int(s.text.split()[1])+1
        return 1

def mfma_passes(op): return 8 if '32x32' in op else 4

def need(prod, cons):
    n=0
    pd=set(prod.defs)
    cu=set(cons.uses); cd=set(cons.defs)
    vec=lambda S:{r for r in S if r[0] in 'va'}
    sg=lambda S:{r for r in S if r[0]=='s'}
    if prod.kind=='valu':
        if vec(pd)&cu:
            if cons.kind=='mfma': n=max(n,2)
            if cons.op.startswith('v_permlane') or 'dpp' in cons.op or 'row_' in cons.text: n=max(n,2)
            if cons.op.startswith(('v_readlane','v_readfirstlane')): n=max(n,1)
            if prod.op.startswith(TRANS) and cons.kind=='valu' and not cons.op.startswith(TRANS): n=max(n,1)
            if prod.op.startswith(TRANS) and cons.kind in('ds','vm'): n=max(n,1)
        if prod.op.startswith('v_dot'):
            if vec(pd)&(cu|cd):
                same = cons.op==prod.op
                if same:
                    ops=[o for o in cons.text.split(';')[0].replace(',',' ').split()[1:]]
                    ab=set(regs_of(ops[1])+regs_of(ops[2]))
                    if vec(pd)&ab: n=max(n,3)
                else: n=max(n,3)
        if sg(pd)&cu:
            if cons.kind=='valu': n=max(n,4 if cons.op.startswith(('v_readlane','v_writelane')) else 2)
            if cons.kind=='vm': n=max(n,5)
            if cons.kind in('salu','smem'): n=max(n,1)
    if prod.kind=='mfma':
        p=mfma_passes(prod.op)
        if cons.kind=='mfma':
            ab=cu-set(cons.cregs) if set(cons.cregs) else cu
            ops=cons.text.split(';')[0].split(None,1)[1].split(',')
            ab=set(regs_of(ops[1])+regs_of(ops[2]))
            if pd&ab: n=max(n,p+4)
            if pd&set(cons.cregs):
                if not(prod.defs==cons.cregs and prod.op==cons.op): n=max(n,p+2)
            elif pd&cd: n=max(n,p+2)
        elif pd&(cu|cd): n=max(n,p+4)
        if cons.kind=='valu' and set(prod.cregs)&cd: n=max(n,p-1)
    if prod.kind=='salu' and ('s','m0') in pd and cons.meta.get('dma'): n=max(n,1)
    if prod.kind=='vm' and 'store' in prod.meta and len(prod.meta['store'])>=3:
        if set(prod.meta['store'])&cd: n=max(n,2)
    return n

class Asm:
    def __init__(s):
        s.L=[]
        s.vm=[]
        s.lg=[]
        s.optdepth=0; s.variant=None; s.stack=[]
        s.uid=0
        s.on_wait=None; s.next_done=0
    def label(s,name): s.L.append(I(name+':', {'var':s.variant}))
    def newlabel(s,p='L'): s.uid+=1; return f'{p}_{s.uid}'
    def raw(s,text,**meta):
        meta['var']=s.variant
        i=I(text,meta); s.L.append(i); return i
    def comment(s,t): s.L.append(I('; '+t, {'var':s.variant}))
    def _cnt(s,q,idx): return sum(1 for o in q[idx+1:] if not o['opt'])
    def _drop(s,q,idx):
        if s.on_wait: s.on_wait(max([o.get('done',0) for o in q[:idx+1] if not o['opt']]+[0]))
        del q[:idx+1]
    def wait(s,vm=None,lg=None):
        parts=[]
        if vm is not None and vm>=0:
            parts.append(f'vmcnt({min(63,s._cnt(s.vm,vm))})'); s._drop(s.vm,vm)
        if lg is not None and lg>=0:
            parts.append(f'lgkmcnt({min(15,s._cnt(s.lg,lg))})'); s._drop(s.lg,lg)
        if parts: s.raw('s_waitcnt '+' '.join(parts))
    def wait_tags(s,tags):
        tags=set(tags); idx=-1
        for k,o in enumerate(s.vm):
            if o['tag'] in tags: idx=k
        done=[o['tag'] for o in s.vm[:idx+1]]
        s.wait(vm=idx); return done
    def wait_lg_all(s): s.wait(lg=len(s.lg)-1)
    def wait_vm_all(s): s.wait(vm=len(s.vm)-1)
    def e(s,text,tag=None,opt=False,**meta):
        i=I(text,dict(meta))
        touch=set(i.uses)|set(i.defs)
        vi=li=-1
        for k,o in enumerate(s.vm):
            if o['defs']&touch: vi=k
        for k,o in enumerate(s.lg):
            if o['defs']&touch: li=k
        if s.optdepth and (vi>=0 or li>=0) and not meta.get('optwait'):
            tgt=(s.vm[vi] if vi>=0 else s.lg[li])
            assert tgt['opt'], f'wait for mandatory op inside optional block: {text}'
            parts=[]
            if vi>=0: parts.append(f'vmcnt({min(63,len(s.vm)-1-vi)})'); s.vm[:]=[o for k,o in enumerate(s.vm) if not(k<=vi and o['opt'])]
            if li>=0: parts.append(f'lgkmcnt({min(15,len(s.lg)-1-li)})'); s.lg[:]=[o for k,o in enumerate(s.lg) if not(k<=li and o['opt'])]
            s.raw('s_waitcnt '+' '.join(parts))
        else:
            s.wait(vm=vi,lg=li)
        i.meta['var']=s.variant
        s.L.append(i)
        opt=opt or s.optdepth>0
        if i.kind=='vm': s.vm.append(dict(tag=tag,defs=set(i.defs),opt=opt,done=0))
        if i.kind=='ds': s.lg.append(dict(tag=tag,defs=set(i.defs),opt=opt,done=0))
        return i
    def begin_var(s,gid,alt,opt=True):
        s.stack.append((alt,opt)); s._setvar()
    def end_var(s):
        s.stack.pop(); s._setvar()
    def _setvar(s):
        alts=[a for a,o in s.stack if not o]; assert len(alts)<=1
        s.optdepth=sum(1 for a,o in s.stack if o)
        s.variant=None if not s.stack else (alts[0] if alts else None, s.optdepth>0)
    def fix_hazards(s):
        MAXD=22
        total=0; changed=True
        while changed:
            changed=False
            for vc,oc in ((0,0),(0,1),(1,0),(1,1)):
                out=[]; hist=[]
                for c in s.L:
                    var=c.meta.get('var')
                    on = var is None or ((var[0] is None or var[0]==vc) and (oc or not var[1]))
                    if on and c.kind not in('label','none'):
                        if c.op!='s_nop':
                            dist=0; req=0
                            for p in reversed(hist):
                                if p.kind in('valu','mfma','vm') or ('s','m0') in p.defs:
                                    n=need(p,c)
                                    if n>dist: req=max(req,n-dist)
                                dist+=p.states()
                                if dist>=MAXD: break
                            while req>0:
                                m=min(req,16); nop=I(f's_nop {m-1}',{'var':var}); out.append(nop); hist.append(nop)
                                req-=m; total+=1; changed=True
                        hist.append(c)
                        if len(hist)>MAXD+2: hist.pop(0)
                    out.append(c)
                s.L=out
        return total
    def text(s):
        out=[]
        for i in s.L:
            out.append(i.text if i.kind=='label' else '  '+i.text)
        return '\n'.join(out)+'\n'

import subprocess, tempfile, os
PROMO = ('v_mov_b32','v_add_f32','v_mul_f32','v_and_b32','v_or_b32','v_xor_b32','v_lshlrev_b32','v_lshrrev_b32','v_exp_f32','v_rcp_f32','v_rsq_f32',
         'v_fmac_f32','v_add_u32','v_max_f32','v_min_u32','v_max_u32','v_subrev_u32','v_mul_u32_u24','v_permlane32_swap_b32','v_permlane16_swap_b32','v_sub_f32')
def sizes_of(A, pre=""):
    txt = '.amdgcn_target "amdgcn-amd-amdhsa--gfx950"\n.text\n' + pre + A.text() + "L_END:\n s_endpgm\n"
    d = tempfile.mkdtemp(); open(d+"/a.s","w").write(txt)
    r = subprocess.run(["clang","-x","assembler","-target","amdgcn-amd-amdhsa","-mcpu=gfx950","-c",d+"/a.s","-o",d+"/a.o"],capture_output=True,text=True)
    assert r.returncode==0, r.stderr[:2000]
    o = subprocess.run(["llvm-objdump","-d","--mcpu=gfx950",d+"/a.o"],capture_output=True,text=True).stdout
    sz=[]
    for l in o.splitlines():
        m = re.search(r'// [0-9A-F]{12}: ((?:[0-9A-F]{8} ?)+)', l)
        if m: sz.append(4*len(m.group(1).split()))
    return sz[:-1]
def align8(A, pre="", minrun=5):
    sz = sizes_of(A, pre)
    ins = [i for i in A.L if i.kind not in ('label','none')]
    assert len(sz)==len(ins), (len(sz),len(ins))
    size = {id(i):s for i,s in zip(ins,sz)}
    nxt4 = {}
    run=0
    for k in range(len(ins)-1,-1,-1):
        nxt4[id(ins[k])]=run
        run = run+1 if sz[k]==8 else 0
    out=[]; off=0; npromo=nnop=0
    for i in A.L:
        if i.kind in ('label','none'): out.append(i); continue
        s=size[id(i)]
        if s==4 and off%8==0 and nxt4[id(i)]>0:
            if i.op in PROMO:
                j=I(i.text.replace(i.op,i.op+'_e64',1), i.meta); out.append(j); off+=8; npromo+=1; continue
            if nxt4[id(i)]>=minrun:
                if i.op=='s_nop' or i.op.startswith('s_cbranch') or i.op=='s_branch':
                    out.append(I('s_nop 0',{'var':i.meta.get('var')})); out.append(i)
                else:
                    out.append(i); out.append(I('s_nop 0',{'var':i.meta.get('var')}))
                off+=8; nnop+=1; continue
        out.append(i); off+=s
    A.L=out
    return npromo,nnop,off
```

```python
import sys, struct, math, os, copy
sys.path.insert(0, os.path.dirname(__file__))
from asmlib import Asm, align8

NAME = "interleave_layers__sliding_local_dilated__mixer_s_mlp__prompt"
def fbits(x): return struct.unpack('<I', struct.pack('<f', x))[0]
def fl(x): return hex(fbits(x))

FLAG, HFLAG, HH, HX, RB, RA, WSZ = 0, 0x1000, 0x10000, 0x40000, 0x100000, 0x300000, 0xA00000
CSP, STT = 0x30000, 0xC0000
PROF = 0xA00000
OOB = 0x7F000000
NSLOT = 39
MISC = NSLOT * 4096
RR, NM, HS, CST = MISC + 0, MISC + 512, MISC + 1024, MISC + 2048
LDS_BYTES = 163840
sWS, sX, sWQ, sWO, sW1, sW2, sW3, sW4, sOUT, sDBG = 4, 8, 12, 16, 20, 24, 28, 32, 36, 40
sW, sJ, sC, sW1K, sOFF, sRA, sRB, sMODE, sTO, sT0, sT1 = 44, 45, 46, 47, 48, 49, 50, 51, 52, 53, 54
sODD, sHALF, sFLAG, sCNT, sHXS, sONES, sTB, sM0, sM1, sNT = 55, 56, 57, 58, 59, 60, 61, 62, 63, 64
sSTA, sSTB, sH2F, sH2H, sT2, sT3, sMYB, sHHS, sW1KP = 65, 66, 67, 68, 69, 70, 71, 72, 73
sTM = 74
sCS, sSTT, sSTS, sCSO, sCSR = 76, 80, 81, 82, 83
sU0, sU1, sFLB = 90, 91, 92
sMP, sMA, sMB = 84, 86, 88
def srd(n): return f"s[{n}:{n+3}]"
vLANE, vWD1, vWDQ, vWD3, vWDH, vXD = 1, 2, 3, 4, 5, 6
vXR = [7, 8, 9]
vWR = [[10, 11, 12], [13, 14, 15]]
vST, vPROF, vHHST, vDUMMY = 16, 19, 20, 21
vWQ = [[None, 17, 18], [None, 22, 23]]
vS1, vS2, vCHK, vCSA, vL4 = 24, 25, 26, 27, 28
vT = [29, 30, 31]
RES, ACC0, ACC1 = 32, 48, 64
WB, XB = 80, 96
TMP = 112
BIG = 128
def v(n, k=1): return f"v{n}" if k == 1 else f"v[{n}:{n+k-1}]"
def a(n, k=1): return f"a{n}" if k == 1 else f"a[{n}:{n+k-1}]"

C0 = -2.0 * math.sqrt(2.0 / math.pi) * math.log2(math.e)
C1 = C0 * 0.044715
EPS = 1e-5
RING = set(range(16, NSLOT)); RING17 = set(range(17, NSLOT))


class Gen:
    def __init__(g, stop=None, prof=False, cfg=None):
        g.A = Asm(); g.stop = stop; g.prof = prof
        g.cfg = dict(winA=9, winB=6, winC=0, maxpoll=400000, cpl=2.25, win=256, qslack=100, wlat=1.0, codelines=23,
                     w4pre=24, qkvA=8, mv_wait=64, mv_small=1, attn_bar=1, xs_bar=0, hh_at=5, q_first=0, cold_at=99, w4_cold=0, x_nt=0, qkv_in=16, qkv_gap=1, gs=[0, 4, 8, 16, 24, 28], xlead=4, halo_at=6, halo_gap=4, cs_at=4, chk_at=10, touch1=6, touch2=9, attn_dma=40, xfirst=6,
                     wo_first=1, w4_b2=0, w4_at=2, first_sc1=1, h2_sc1=1, wo_at=4)
        g.cfg.update(cfg or {})
        g.free = set(range(NSLOT)); g.slot = {}; g.visible = set()
        g.pend_free = []
        g.WBX = WB
        g.M = []; g.dest = {}; g.banks = set()
        g.Q = []; g.nstamp = 0; g.stamps = []
        g.gid = 0
        g.now = 0; g.mfree = 0; g.fifo = []; g.flast = 0; g.ta = 0; g.lfree = 0; g.nlines = 0
        g.A.on_wait = lambda t: setattr(g, 'now', max(g.now, t))

    def e(g, t, lines=None, lat=None, **k):
        i = g.A.e(t, **k)
        if i.kind == 'mfma':
            t0 = max(g.now, g.mfree); g.mfree = t0 + (32 if '32x32' in i.op else 16); g.now = t0 + 8
        elif i.op.startswith(('v_pk_', 'v_dot')): g.now = (g.mfree + 12 if g.mfree > g.now else g.now) + 4
        elif i.op.startswith(('v_exp', 'v_rcp', 'v_rsq', 'v_permlane')): g.now += 8
        elif i.kind == 'ds':
            cost = {'ds_read_b128': 16, 'ds_write_b128': 26, 'ds_write_b64': 14, 'ds_read2_b32': 16, 'ds_read2st64_b32': 16}.get(i.op, 8)
            g.now = max(g.now + 4, g.lfree - 100); g.lfree = max(g.lfree, g.now) + cost
            g.A.lg[-1]['done'] = g.lfree + 50
        elif i.kind == 'vm' and not g.A.optdepth:
            st = 'store' in i.meta
            lines = lines or (64 if st and 'x4' in i.op else 8)
            start, done = g.pipe_slot(lines, lat or (450 if st else 330))
            g.nlines += lines
            g.ta = start + 64; g.flast = done; g.fifo.append((done, lines))
            g.now = max(g.now + 4, start - g.cfg['qslack'])
            g.A.vm[-1]['done'] = done
        else: g.now += 4
        return i
    def pipe_slot(g, lines, lat):
        start = max(g.now, g.ta); tot = lines
        for done, n in reversed(g.fifo[-16:]):
            tot += n
            if tot > g.cfg['win']: start = max(start, done); break
        return start, max(start + lat, g.flast + lines * g.cfg['cpl'])
    def c(g, t): g.A.comment(t)
    def stamp(g, name):
        if not g.prof or (g.cfg.get('fine', 0) in (2, 3, 4) and not getattr(g, 'fineon', 0) and name not in ('start', 'end')): return
        g.A.wait_lg_all()
        g.A.raw(f"s_memtime s[{sTM}:{sTM+1}]"); g.A.raw("s_waitcnt lgkmcnt(0)")
        g.A.e(f"v_writelane_b32 {v(vPROF)}, s{sTM}, {g.nstamp}")
        g.stamps.append(f"{name} {int(g.now)}"); g.nstamp += 1
        if g.cfg.get('trace'): print(f"{name:14s} model t={int(g.now):6d} lines issued since last: {g.nlines:5d} (= {g.nlines/32:.1f} units)  free slots {len(g.free)}"); g.nlines = 0
        if name in ("start", "end"):
            g.A.raw(f"s_memrealtime s[{sTM}:{sTM+1}]"); g.A.raw("s_waitcnt lgkmcnt(0)")
            g.A.e(f"v_writelane_b32 {v(vPROF)}, s{sTM}, {62 if name == 'start' else 63}")
    def fstamp(g, name):
        if g.cfg.get('fine') == 1: g.stamp(name)
    def opt_begin(g, cond, alt=0):
        g.gid += 1; lab = g.A.newlabel('SK')
        for t in cond[:-1]: g.e(t)
        g.e(f"{cond[-1]} {lab}")
        g.A.begin_var(g.gid, alt); return lab
    def opt_end(g, lab): g.A.end_var(); g.A.label(lab)
    def wave_begin(g, w): return g.opt_begin([f"s_cmp_lg_u32 s{sW}, {w}", "s_cbranch_scc1"])

    def alloc(g, unit, allowed=None):
        cand = sorted(x for x in g.free if allowed is None or x in allowed)
        if not cand: return None
        s_ = cand[0]; g.free.remove(s_); g.slot[unit] = s_; return s_
    def issue(g, u):
        if 'fn' in u:
            if len([x for x in g.free if x >= 20]) < u.get('slots', 0): return False
            u['fn'](); return True
        if u.get('lds') is not None: addr, wreg = u['lds'], sW1KP
        else:
            s_ = g.alloc(u['name'], u.get('allowed'))
            if s_ is None: return False
            addr, wreg = s_ * 4096, sW1K
        g.e(f"s_add_u32 m0, s{wreg}, {addr}")
        if u['sbase'] is None: g.e(f"s_mov_b32 s{sOFF}, {u['goff']}")
        else: g.e(f"s_add_u32 s{sOFF}, s{u['sbase']}, {u['goff']}")
        g.e(f"buffer_load_dwordx4 {v(u['voff'])}, {srd(u['srd'])}, s{sOFF} offen {u.get('aux', '')} lds".replace("  ", " "), tag=u['name'],
            lines=u.get('lines', 32), lat=u.get('lat', 330 if u.get('aux') else g.cfg['wlat'] * {vWD1: 650, vWDQ: 710, vWD3: 800, vWDH: 720}[u['voff']]))
        return True
    def pump(g, n=1):
        k = 0
        while k < n and g.Q:
            if not g.issue(g.Q[0]): break
            g.Q.pop(0); k += 1
        return k
    def auto(g, n=1, ok=None, block=0):
        k = 0
        while k < n and g.Q and g.pipe_slot(g.Q[0].get('lines', 32), 0)[0] - g.cfg['qslack'] <= g.now + 12 + block:
            if ok and not ok(g.Q[0], False): break
            u = g.Q[0]
            if not g.issue(u): break
            if ok: ok(u, True)
            g.Q.pop(0); k += 1
        return k
    def auto_until(g, need, ok=None):
        g.force([n for n in need if n not in g.visible])
        t = max([o['done'] for o in g.A.vm if o['tag'] in need] + [0])
        while g.auto(1, ok, block=max(0, t - g.now)): pass
    def budget(g, n, free=lambda u: bool(u.get('aux'))):
        left = [n]
        def ok(u, commit):
            if free(u) or 'fn' in u: return True
            if commit: left[0] -= 1
            return left[0] > 0
        return ok
    def force(g, names):
        names = set(names)
        while any(u['name'] in names for u in g.Q):
            assert g.issue(g.Q[0]), f"no LDS slot for {g.Q[0]['name']} (needed for {names}) free={g.free} slots={g.slot}"
            g.Q.pop(0)
    def release(g, unit): g.pend_free.append(unit)
    def barrier(g, need=(), lds_all=False, extra_tags=()):
        need = [n for n in need if n not in g.visible]
        g.force(need)
        g.A.wait_tags(list(need) + list(extra_tags))
        if lds_all: g.A.wait_lg_all()
        g.A.raw("s_barrier")
        g.now += 30
        out = set(o['tag'] for o in g.A.vm)
        for n in g.slot:
            if n not in out: g.visible.add(n)
        for n in need: g.visible.add(n)
        pend = set(o['tag'] for o in g.A.lg)
        keep = []
        for u in g.pend_free:
            if u in pend: keep.append(u)
            else:
                g.free.add(g.slot.pop(u)); g.visible.discard(u)
        g.pend_free = keep
    def stage(g, unit, kind, base, bank, shape=32):
        g.M.append(dict(u=unit, kind=kind, base=base, bank=bank, shape=shape, k=0, n=4 if shape == 32 else 2))
        g.dest[unit] = (kind, base)
    def move_one(g, m):
        k = m['k']; e_ = k & 1; regs = (vWR if m['shape'] == 32 else vWQ)[e_]
        r, imm = g.ldsref(regs, g.slot[m['u']] * 4096 + (k >> 1) * 2048)
        g.e(f"ds_read_b64_tr_b16 {(v if m['kind'] == 'v' else a)(m['base'] + 2 * k, 2)}, {v(r)} offset:{imm}", tag=m['u'])
        m['k'] += 1
        if m['k'] == m['n']: g.release(m['u']); g.M.remove(m)
    def moves(g, n):
        k = 0
        while k < n:
            c = [m for m in g.M if m['u'] in g.visible and m['u'] in g.slot and m['bank'] in g.banks]
            if not c: break
            g.move_one(c[0]); k += 1
        return k
    def force_move(g, unit):
        for m in [m for m in g.M if m['u'] == unit]:
            assert unit in g.visible and m['bank'] in g.banks, (unit, m['bank'], g.banks)
            while m['k'] < m['n']: g.move_one(m)
    def unmoved(g, units): return [u for u in units if u not in g.dest or any(m['u'] == u for m in g.M)]
    def ldsref(g, regs, addr): return regs[addr >> 16], addr & 0xFFFF

    def uW(g, mat, u, tagp, allowed=None):
        n = f"{tagp}W{mat}_{u}"
        if mat in ('o', '1', '2', '4'):
            return dict(name=n, voff=vWD1, srd={'o': sWO, '1': sW1, '2': sW2, '4': sW4}[mat], sbase=None, goff=u * 32 * 1024, allowed=allowed)
        if mat in ('q', 'k', 'v'):
            return dict(name=n, voff=vWDQ, srd=sWQ, sbase=None, goff=u * 32 * 3072 + 'qkv'.index(mat) * 1024, allowed=allowed)
        if mat in ('3a', '3b', '3c'):
            return dict(name=n, voff=vWD3, srd=sW3, sbase=sODD, goff=u * 32 * 3584 + 'abc'.index(mat[1]) * 128, allowed=allowed)
        if mat == '3d':
            return dict(name=n, voff=vWDH, srd=sW3, sbase=sHALF, goff=u * 64 * 3584, allowed=allowed, lines=64)
    def uX(g, base, u, tagp, allowed=None, lds=None):
        return dict(name=f"{tagp}X_{u}", voff=vXD, srd=sWS, sbase=base, goff=u * 4096, aux="sc1", allowed=allowed, lds=lds)
    def uS(g, tagp): return [dict(name=f"{tagp}S_{u}", voff=vXD, srd=sWS, sbase=sSTT, goff=u * 4096, aux="sc1", allowed=RING) for u in (0, 1)]

    def windows(g, regs):
        b = regs[0] if regs[0] is not None else regs[1]
        g.e(f"v_add_u32 {v(regs[2])}, 0x20000, {v(b)}")
        g.e(f"v_add_u32 {v(regs[1])}, 0x10000, {v(b)}")
    def setup_wr(g, shape, perm, dst=None):
        t0, t1, t2 = vT; L = v(vLANE); dst = dst or vWR
        for e_ in (0, 1):
            d = dst[e_][0] if dst[e_][0] is not None else dst[e_][1]
            if shape == 32: g.e(f"v_lshrrev_b32 {v(t0)}, 5, {L}")
            else: g.e(f"v_bfe_u32 {v(t0)}, {L}, 4, 1")
            g.e(f"v_bfe_u32 {v(t1)}, {L}, 2, 2")
            if perm:
                g.e(f"v_lshl_add_u32 {v(d)}, {v(t0)}, 2, {v(t1)}")
                if e_: g.e(f"v_add_u32 {v(d)}, 8, {v(d)}")
            else:
                g.e(f"v_lshl_add_u32 {v(d)}, {v(t0)}, 3, {v(t1)}")
                if e_: g.e(f"v_add_u32 {v(d)}, 4, {v(d)}")
            if shape == 16:
                g.e(f"v_lshrrev_b32 {v(t2)}, 5, {L}")
                g.e(f"v_lshl_add_u32 {v(d)}, {v(t2)}, 4, {v(d)}")
            g.e(f"v_lshlrev_b32 {v(d)}, 7, {v(d)}")
            g.e(f"v_and_b32 {v(t1)}, 2, {v(t1)}")
            if e_: g.e(f"v_xor_b32 {v(t0)}, 1, {v(t0)}")
            g.e(f"v_or_b32 {v(t0)}, {v(t0)}, {v(t1)}")
            if shape == 32:
                g.e(f"v_bfe_u32 {v(t1)}, {L}, 4, 1")
                g.e(f"v_lshl_add_u32 {v(t1)}, s{sNT}, 1, {v(t1)}")
                g.e(f"v_xor_b32 {v(t0)}, {v(t0)}, {v(t1)}")
            else:
                g.e(f"v_xor_b32 {v(t0)}, s{sW}, {v(t0)}")
            g.e(f"v_lshl_add_u32 {v(d)}, {v(t0)}, 5, {v(d)}")
            g.e(f"v_and_b32 {v(t1)}, 3, {L}")
            g.e(f"v_lshl_add_u32 {v(d)}, {v(t1)}, 3, {v(d)}")
            g.windows(dst[e_])
    def setup_xr32(g, rowstride=1024):
        t0, t1, _ = vT; L = v(vLANE); d = vXR[0]
        g.e(f"v_and_b32 {v(t0)}, 31, {L}")
        g.e(f"v_lshl_add_u32 {v(t0)}, s{sTB}, 5, {v(t0)}")
        g.e(f"v_lshlrev_b32 {v(d)}, 4, {v(t0)}")
        g.e(f"v_lshrrev_b32 {v(t1)}, 5, {L}")
        g.e(f"v_mul_u32_u24 {v(t1)}, {rowstride}, {v(t1)}")
        g.e(f"v_add_u32 {v(d)}, {v(d)}, {v(t1)}")
        g.windows(vXR)

    def poll(g, load, cmp_fail, preloaded=False):
        A = g.A; lp = A.newlabel('PL'); dn = A.newlabel('PD'); ok = A.newlabel('PK')
        if preloaded:
            for t in cmp_fail: g.e(t)
            A.raw(f"s_cbranch_vccz {ok}")
        own = not A.optdepth
        if own: g.gid += 1; A.begin_var(g.gid, 0)
        A.raw(f"s_mov_b32 s{sCNT}, s{sTO}")
        A.label(lp)
        A.raw(load); A.raw(f"s_add_u32 s{sCNT}, s{sCNT}, 1")
        A.raw(f"s_cmp_gt_u32 s{sCNT}, {g.cfg['maxpoll']}")
        A.raw("s_waitcnt vmcnt(0)")
        A.raw(f"s_cbranch_scc1 {dn}")
        for t in cmp_fail: A.raw(t)
        A.raw(f"s_cbranch_vccnz {lp}")
        A.raw(f"s_mov_b32 s{sCNT}, 0")
        A.label(dn)
        A.raw(f"s_mov_b32 s{sTO}, s{sCNT}")
        if own: A.end_var()
        A.label(ok)
    def handoff(g, phase, stores, mid=None, winB=None, winC=None, need=[], need0=[], after_ack=None, nmv=None):
        A = g.A; t0, t1, t2 = vT
        g.pump(g.cfg['winB'] if winB is None else winB)
        g.barrier(need0, extra_tags=stores, lds_all=True)
        g.stamp(f"h{phase}_acked")
        lab = g.wave_begin(0)
        sl = A.newlabel('SL'); dn = A.newlabel('SD')
        A.raw(f"v_mov_b32 {v(t0)}, {phase}")
        A.raw(f"v_mov_b32 {v(t1)}, 0")
        A.raw("s_mov_b64 exec, 1")
        A.raw(f"s_cmp_eq_u32 s{sMODE}, 0")
        A.raw(f"s_cbranch_scc1 {sl}")
        A.raw(f"buffer_store_dword {v(t0)}, {v(t1)}, {srd(sWS)}, s{sFLAG} offen")
        A.raw(f"s_branch {dn}")
        A.label(sl)
        A.raw("buffer_wbl2 sc1"); A.raw("s_waitcnt vmcnt(0)")
        A.raw(f"buffer_store_dword {v(t0)}, {v(t1)}, {srd(sWS)}, s{sFLAG} offen sc1")
        A.label(dn)
        A.raw("s_mov_b64 exec, -1")
        g.opt_end(lab)
        if after_ack: after_ack()
        if g.stop == phase: return g.finish()
        tt = g.now
        g.pump(g.cfg['winC'] if winC is None else winC)
        if mid: mid()
        g.moves(g.cfg['mv_wait'] if nmv is None else nmv)
        lab = g.wave_begin(0)
        A.raw("s_mov_b64 exec, 0xff")
        g.poll(f"buffer_load_dword {v(t0)}, {v(vL4)}, {srd(sWS)}, s{sFLB} offen sc1", [f"v_cmp_gt_u32 vcc, {phase}, {v(t0)}"])
        A.raw("s_mov_b64 exec, -1")
        fa = A.newlabel('FA')
        A.raw(f"s_cmp_lg_u32 s{sMODE}, 0"); A.raw(f"s_cbranch_scc1 {fa}")
        A.raw("buffer_inv sc1"); A.raw("s_waitcnt vmcnt(0)")
        A.label(fa)
        g.opt_end(lab)
        g.now = max(g.now, tt + 650, g.flast)
        g.barrier(need, lds_all=True)
        g.stamp(f"h{phase}_go")
        return False
    def finish(g):
        if g.prof:
            g.stamp("end")
            g.e(f"s_lshl_b32 s{sT0}, s2, 10")
            g.e(f"s_add_u32 s{sT0}, s{sT0}, {PROF}")
            g.e(f"v_lshrrev_b32 {v(vT[0])}, 2, {v(vXD)}")
            g.e(f"buffer_store_dword {v(vPROF)}, {v(vT[0])}, {srd(sWS)}, s{sT0} offen")
        g.A.raw("s_endpgm")
        g.done = True
        return True

    def gemm32(g, steps, groups, acc, zero, fill=None, ok=None, depth=2, nfill=0, fill_from=0, pre_bar=None, dma=True, hooks={}, nmove=0, nb=4):
        n = len(steps); fill = fill if fill is not None else []
        def reads(k):
            st = steps[k]; wb = g.WBX + 4 * (k % nb)
            if st.get('wu') in g.dest:
                g.force_move(st['wu']); kind, base = g.dest[st['wu']]
                st['wt'] = (v if kind == 'v' else a)(base + 4 * st['half'], 4)
                st['rel'] = [u for u in st.get('rel', []) if u != st['wu']]
            else:
                wr, addr = st['w'][0], st['w'][1]()
                for e_ in (0, 1):
                    r, imm = g.ldsref(wr[e_], addr)
                    g.e(f"ds_read_b64_tr_b16 {v(wb + 2 * e_, 2)}, {v(r)} offset:{imm}", tag=st.get('wu'))
                st['wt'] = v(wb, 4)
            if st['x'][0] == 'lds':
                dst = st['x'][2] if st['x'][2] is not None else XB + 4 * (k % nb)
                r, imm = g.ldsref(vXR, st['x'][1]())
                g.e(f"ds_read_b128 {v(dst, 4)}, {v(r)} offset:{imm}", tag=st.get('xu'))
                st['xr'] = dst
            else: st['xr'] = st['x'][1]
            for u in st.get('rel', []): g.release(u)
        for i in range(-depth, n):
            k = i + depth
            if k < n:
                if k in groups:
                    need = g.unmoved(groups[k])
                    if dma: g.auto_until(need, ok)
                    if pre_bar: pre_bar(k)
                    g.barrier(need)
                    if g.cfg.get('fine') == 2 and getattr(g, 'fineon', 0): g.stamp(f"bar{k}")
                    if g.cfg.get('fine') == 4 and getattr(g, 'fineon', 0) and k == 0: g.stamp(f"bar{k}")
                    if g.cfg.get('drain'): g.A.wait_lg_all()
                reads(k)
            if i >= 0:
                st = steps[i]
                cc = "0" if (zero and i == 0) else v(acc, 16)
                g.e(f"v_mfma_f32_32x32x16_bf16 {v(acc, 16)}, {st['wt']}, {v(st['xr'], 4)}, {cc}")
                if i >= fill_from:
                    for _ in range(nfill):
                        if fill: fill.pop(0)()
                if dma: g.auto(1, ok)
                g.moves(nmove)
                if i in hooks: hooks[i]()
    def stats_out(g, acc, aux=''):
        T = TMP
        for q in range(4): g.e(f"v_pk_add_f32 {v(T + 2 * q, 2)}, {v(acc + 4 * q, 2)}, {v(acc + 4 * q + 2, 2)}")
        g.e(f"v_pk_mul_f32 {v(T + 8, 2)}, {v(acc, 2)}, {v(acc, 2)}")
        for q in range(1, 8): g.e(f"v_pk_fma_f32 {v(T + 8, 2)}, {v(acc + 2 * q, 2)}, {v(acc + 2 * q, 2)}, {v(T + 8, 2)}")
        g.e(f"v_pk_add_f32 {v(T, 2)}, {v(T, 2)}, {v(T + 2, 2)}")
        g.e(f"v_pk_add_f32 {v(T + 4, 2)}, {v(T + 4, 2)}, {v(T + 6, 2)}")
        g.e(f"v_add_f32 {v(T + 8)}, {v(T + 8)}, {v(T + 9)}")
        g.e(f"v_pk_add_f32 {v(T, 2)}, {v(T, 2)}, {v(T + 4, 2)}")
        g.e(f"v_add_f32 {v(T)}, {v(T)}, {v(T + 1)}")
        g.e(f"v_permlane32_swap_b32 {v(T)}, {v(T + 8)}")
        g.e(f"v_add_f32 {v(T)}, {v(T)}, {v(T + 8)}")
        g.e(f"buffer_store_dword {v(T)}, {v(vL4)}, {srd(sWS)}, s{sSTS} offen{aux}", tag="st")
    def stats_in(g, tagp, double):
        T = TMP + 10; B = ACC1
        nm, k0, k1, ir, r, nmr = T, T + 1, T + 2, T + 3, T + 4, T + 5
        t0, t1, t2 = vT; ops = []
        E = lambda t, **k: ops.append(lambda: g.e(t, **k))
        def addr():
            s0, s1 = g.slot[f"{tagp}S_0"], g.slot[f"{tagp}S_1"]
            g.e(f"s_mul_i32 s{sT2}, s{sTB}, {(s1 - s0) * 4096}"); g.e(f"s_add_u32 s{sT2}, s{sT2}, {s0 * 4096}")
            g.e(f"v_add_u32 {v(t0)}, s{sT2}, {v(vL4)}")
        ops.append(addr)
        for i in range(8): E(f"ds_read2st64_b32 {v(B + 2 * i, 2)}, {v(t0)} offset0:{2 * i} offset1:{2 * i + 1}", tag=f"{tagp}S_0")
        ops.append(lambda: (g.release(f"{tagp}S_0"), g.release(f"{tagp}S_1")))
        for st in (1, 2, 4, 8):
            for i in range(0, 16, 2 * st): E(f"v_add_f32 {v(B + i)}, {v(B + i)}, {v(B + i + st)}")
        E(f"v_mov_b32 {v(t1)}, {v(B)}")
        E(f"v_permlane32_swap_b32 {v(B)}, {v(t1)}")
        E(f"v_mul_f32 {v(nm)}, {fl(-1.0 / 512)}, {v(B)}")
        E(f"v_mul_f32 {v(t1)}, {fl(1.0 / 512)}, {v(t1)}")
        E(f"v_fma_f32 {v(t1)}, -{v(nm)}, {v(nm)}, {v(t1)}")
        E(f"v_max_f32 {v(t1)}, 0, {v(t1)}")
        E(f"v_add_f32 {v(t0)}, {fl(EPS)}, {v(t1)}")
        E(f"v_rsq_f32 {v(r)}, {v(t0)}")
        if double:
            E(f"v_mul_f32 {v(t1)}, {v(t1)}, {v(r)}")
            E(f"v_mul_f32 {v(t1)}, {v(t1)}, {v(r)}")
            E(f"v_add_f32 {v(t1)}, {fl(EPS)}, {v(t1)}")
            E(f"v_rsq_f32 {v(t1)}, {v(t1)}")
            E(f"v_mul_f32 {v(nmr)}, {v(nm)}, {v(r)}")
            E(f"v_mul_f32 {v(t0)}, {v(t1)}, {v(r)}")
        else:
            E(f"v_mul_f32 {v(nmr)}, {v(nm)}, {v(r)}")
            E(f"v_mov_b32 {v(t0)}, {v(r)}")
        E(f"v_rcp_f32 {v(ir)}, {v(t0)}")
        E(f"v_mul_f32 {v(k0)}, {fl(C0)}, {v(t0)}")
        E(f"v_mul_f32 {v(t1)}, {v(t0)}, {v(t0)}")
        E(f"v_mul_f32 {v(t1)}, {v(t1)}, {v(t0)}")
        E(f"v_mul_f32 {v(k1)}, {fl(C1)}, {v(t1)}")
        return ops
    def bc(g, r): return v(r & ~1, 2), r & 1
    def gelu_ops(g, acc, n, csaddr, csoff, out, packed, csbuf=None):
        T = TMP + 10; nm, k0, k1, ir = T, T + 1, T + 2, T + 3
        ops = []; E = lambda t: ops.append(lambda: g.e(t))
        def pk(op, d, s0, s1, s2=None):
            txt = []; sel = []; hi = []
            for s_ in [s0, s1] + ([s2] if s2 is not None else []):
                if isinstance(s_, tuple): t, b = g.bc(s_[0]); txt.append(t); sel.append(b); hi.append(b)
                else: txt.append(v(s_, 2)); sel.append(0); hi.append(1)
            E(f"{op} {v(d, 2)}, {', '.join(txt)} op_sel:[{','.join(map(str, sel))}] op_sel_hi:[{','.join(map(str, hi))}]")
        nq = n // 4
        cb = (lambda i: csbuf + 4 * i) if csbuf is not None else (lambda i: TMP + 4 * (i & 1))
        rd = lambda i: E(f"ds_read_b128 {v(cb(i), 4)}, {v(csaddr)} offset:{csoff + 32 * i}")
        if csbuf is None: rd(0); rd(1)
        for i in range(nq):
            if packed:
                for h in (0, 2): pk("v_pk_fma_f32", acc + 4 * i + h, cb(i) + h, (nm,), acc + 4 * i + h)
            else:
                for h in range(4): E(f"v_fmac_f32 {v(acc + 4 * i + h)}, {v(cb(i) + h)}, {v(nm)}")
            if csbuf is None and i + 2 < nq: rd(i + 2)
        X = TMP
        for p in range(0, n, 4):
            t = acc + p
            if packed:
                for h in (0, 2): pk("v_pk_mul_f32", X + h, t + h, t + h)
                for h in (0, 2): pk("v_pk_fma_f32", X + h, X + h, (k1,), (k0,))
                for h in (0, 2): pk("v_pk_mul_f32", X + h, X + h, t + h)
            else:
                for h in range(4): E(f"v_mul_f32 {v(X + h)}, {v(t + h)}, {v(t + h)}")
                for h in range(4): E(f"v_fma_f32 {v(X + h)}, {v(X + h)}, {v(k1)}, {v(k0)}")
                for h in range(4): E(f"v_mul_f32 {v(X + h)}, {v(X + h)}, {v(t + h)}")
            for h in range(4): E(f"v_exp_f32 {v(X + h)}, {v(X + h)}")
            if packed:
                for h in (0, 2): pk("v_pk_fma_f32", X + h, X + h, (ir,), (ir,))
            else:
                for h in range(4): E(f"v_fma_f32 {v(X + h)}, {v(X + h)}, {v(ir)}, {v(ir)}")
            for h in range(4): E(f"v_rcp_f32 {v(X + h)}, {v(X + h)}")
            if packed:
                for h in (0, 2): pk("v_pk_mul_f32", X + h, X + h, t + h)
            else:
                for h in range(4): E(f"v_mul_f32 {v(X + h)}, {v(X + h)}, {v(t + h)}")
            for h in (0, 2): E(f"v_cvt_pk_bf16_f32 {v(out + (p + h) // 2)}, {v(X + h)}, {v(X + h + 1)}")
        return ops
    def pack16(g, acc, out):
        for q in range(8): g.e(f"v_cvt_pk_bf16_f32 {v(out + q)}, {v(acc + 2 * q)}, {v(acc + 2 * q + 1)}")
    def store_x(g, pk, sbase, tag, aux=''):
        g.e(f"buffer_store_dwordx4 {v(pk, 4)}, {v(vST)}, {srd(sWS)}, s{sbase} offen{aux}", tag=tag)
        g.e(f"buffer_store_dwordx4 {v(pk + 4, 4)}, {v(vST)}, {srd(sWS)}, s{sbase} offen offset:2048{aux}", tag=tag)
    def cold(g):
        sub = [f"s_lshl_b32 s{sU0}, s2, 11", f"s_lshl_b32 s{sU1}, s{sJ}, 7", f"s_sub_u32 s{sU0}, s{sU0}, s{sU1}"]
        g.touch(sW1, 16, sub, 0); g.touch(sW2, 16, sub, 1)
        for u in range(2): assert g.issue(dict(name=f"cs_{u}", voff=vWD3, srd=sCS, sbase=sCSO, goff=u * 32 * 3584, lat=2500, allowed=set(range(20, NSLOT))))
        if g.cfg['w4_cold'] == 0: g.cold_w4()
    def cold_w4(g): g.touch(sW4, 56, [f"s_mul_i32 s{sU0}, s2, 7168", f"s_lshl_b32 s{sU1}, s{sJ}, 7", f"s_sub_u32 s{sU0}, s{sU0}, s{sU1}"], 2)
    def batch2(g, layer):
        sub = lambda mul, cs: [f"s_mul_i32 s{sU0}, s2, {mul}", f"s_mul_i32 s{sU1}, s{sJ}, {cs}", f"s_sub_u32 s{sU0}, s{sU0}, s{sU1}"]
        if layer:
            g.touch3(sW1, 16, 1024, 1); g.touch3(sW2, 16, 1024, 2)
    def touch3(g, srdn, nrows, rs, wave, extra=0):
        if not g.cfg.get('t3', 1): return
        lab = g.wave_begin(wave)
        g.A.raw(f"s_lshr_b32 s{sU0}, s2, 3"); g.A.raw(f"s_mul_i32 s{sU0}, s{sU0}, {nrows * rs}")
        g.A.raw(f"s_lshl_b32 s{sU1}, s{sJ}, 7"); g.A.raw(f"s_sub_u32 s{sU0}, s{sU0}, s{sU1}"); g.A.raw(f"s_add_u32 s{sU0}, s{sU0}, {384 + extra}")
        g.A.raw(f"v_mul_u32_u24 v0, {rs}, {v(vLANE)}"); g.A.raw(f"v_add_u32 v0, s{sU0}, v0")
        g.A.raw(f"s_mov_b32 exec_lo, {hex((1 << min(32, nrows)) - 1)}"); g.A.raw(f"s_mov_b32 exec_hi, {hex((1 << max(0, nrows - 32)) - 1)}")
        g.A.raw(f"buffer_load_dword {v(vDUMMY)}, v0, {srd(srdn)}, 0 offen")
        g.A.raw("s_mov_b64 exec, -1")
        g.opt_end(lab)
    def touch(g, srdn, nlines, sexpr, wave):
        lab = g.wave_begin(wave)
        for t in sexpr: g.A.raw(t)
        g.A.raw(f"v_lshlrev_b32 v0, 7, {v(vLANE)}")
        if nlines < 64:
            g.A.raw(f"s_mov_b32 exec_lo, {hex((1 << min(32, nlines)) - 1)}")
            g.A.raw(f"s_mov_b32 exec_hi, {hex((1 << max(0, nlines - 32)) - 1)}")
        g.A.raw(f"buffer_load_dword {v(vDUMMY)}, v0, {srd(srdn)}, s{sU0} offen")
        if nlines < 64: g.A.raw("s_mov_b64 exec, -1")
        g.opt_end(lab)

    def prologue(g):
        A = g.A; t0, t1, t2 = vT; L = v(vLANE)
        A.raw("s_cmp_ge_u32 s2, 256"); A.raw("s_cbranch_scc1 L_END")
        for s_, off in ((sX, 0), (sWQ, 8), (sWS, 80), (sWO, 16), (sW1, 32), (sW2, 40), (sW3, 48), (sW4, 56), (sOUT, 64), (sDBG, 72)):
            A.raw(f"s_load_dwordx2 s[{s_}:{s_+1}], s[0:1], {off}")
        g.e(f"v_lshrrev_b32 {L}, 6, v0")
        g.e(f"v_readfirstlane_b32 s{sW}, {L}")
        g.e(f"v_and_b32 {L}, 63, v0")
        g.e(f"s_lshr_b32 s{sJ}, s2, 3"); g.e(f"s_and_b32 s{sJ}, s{sJ}, 7")
        g.e(f"s_and_b32 s{sC}, s2, 7"); g.e(f"s_lshl_b32 s{sC}, s{sC}, 2")
        g.e(f"s_lshr_b32 s{sT0}, s2, 6"); g.e(f"s_add_u32 s{sC}, s{sC}, s{sT0}")
        g.e(f"s_lshl_b32 s{sW1K}, s{sW}, 10"); g.e(f"s_mul_i32 s{sW1KP}, s{sW}, 1088")
        g.e(f"s_lshr_b32 s{sTB}, s{sW}, 1"); g.e(f"s_and_b32 s{sNT}, s{sW}, 1")
        for s_, n in ((sX, 2 << 20), (sWQ, 512 * 3072), (sWS, WSZ + (0x40000 if g.prof else 0)), (sWO, 1 << 19), (sW1, 1 << 19), (sW2, 1 << 19),
                      (sW3, 512 * 3584), (sW4, 1792 * 1024), (sOUT, 2 << 20), (sDBG, 256)):
            g.e(f"s_mov_b32 s{s_+2}, {n}"); g.e(f"s_mov_b32 s{s_+3}, 0x20000")
        g.e(f"s_mov_b32 s{sCS+3}, 0x20000")
        g.e(f"s_mov_b32 s{sONES}, 0x3f803f80"); g.e(f"s_mov_b32 s{sTO}, 0"); g.e(f"s_mov_b32 s{sMODE}, 0")
        if g.prof: g.e(f"v_mov_b32 {v(vPROF)}, 0")
        g.e(f"v_lshlrev_b32 {v(vXD)}, 4, v0")
        g.e(f"s_lshl_b32 s{sT2}, s{sC}, 16"); g.e(f"s_sub_u32 s{sT2}, s{sT2}, 16384")
        g.e(f"s_add_u32 s{sT3}, s{sT2}, s{sW1K}")
        g.e(f"v_lshrrev_b32 {v(t0)}, 3, {L}")
        g.e(f"v_lshl_add_u32 {v(t0)}, s{sW}, 3, {v(t0)}")
        g.e(f"v_bfe_u32 {v(t1)}, {L}, 4, 1")
        g.e(f"v_lshlrev_b32 {v(t1)}, 1, {v(t1)}")
        g.e(f"v_lshrrev_b32 {v(t2)}, 5, {L}")
        g.e(f"v_xor_b32 {v(t2)}, s{sNT}, {v(t2)}")
        g.e(f"v_or_b32 {v(t1)}, {v(t1)}, {v(t2)}")
        g.e(f"v_lshlrev_b32 {v(t1)}, 1, {v(t1)}")
        g.e(f"v_and_b32 {v(t2)}, 7, {L}")
        g.e(f"v_xor_b32 {v(t1)}, {v(t1)}, {v(t2)}")
        g.e(f"v_lshlrev_b32 {v(t1)}, 4, {v(t1)}")
        for d, rs in ((vWD1, 1024), (vWDQ, 3072), (vWD3, 3584)):
            g.e(f"v_mul_u32_u24 {v(d)}, {rs}, {v(t0)}")
            g.e(f"v_add_u32 {v(d)}, {v(d)}, {v(t1)}")
        A.raw("s_waitcnt lgkmcnt(0)")
        g.stamp("start")
        g.e(f"s_mul_i32 s{sT0}, s{sJ}, 10240"); g.e(f"s_mul_i32 s{sT1}, s{sW}, 2560"); g.e(f"s_add_u32 s{sT0}, s{sT0}, s{sT1}"); g.e(f"s_add_u32 s{sT0}, s{sT0}, s{sT2}")
        g.e(f"v_lshlrev_b32 {v(t2)}, 7, {L}"); g.e(f"v_add_u32 {v(t0)}, s{sT0}, {v(t2)}")
        g.e("s_mov_b64 exec, 0xfffff")
        g.e(f"buffer_load_dword {v(vDUMMY)}, {v(t0)}, {srd(sX)}, 0 offen{' nt' if g.cfg['x_nt'] else ''}", lines=80, lat=1800); A.vm[-1]['defs'] = set()
        g.e("s_mov_b64 exec, -1")
        g.touch(sWQ, 48, [f"s_mul_i32 s{sU0}, s2, 6144"], 0)
        if g.cfg['wo_first']: g.touch(sWO, 16, [f"s_lshl_b32 s{sU0}, s2, 11"], 2)
        g.flast += 300
        if g.cfg.get('tlb'):
            lab = g.wave_begin(3)
            A.raw(f"v_lshlrev_b32 v0, {g.cfg['tlb']}, {L}")
            for s_ in (sW1, sW2, sW3, sW4): A.raw(f"buffer_load_dword {v(vDUMMY)}, v0, {srd(s_)}, 0 offen")
            A.raw("s_mov_b64 exec, 15")
            for base, mul in ((RA, 229376), (RB, 65536)):
                A.raw(f"s_mul_i32 s{sU0}, s{sC}, {mul}"); A.raw(f"s_add_u32 s{sU0}, s{sU0}, {base}")
                A.raw(f"buffer_load_dword {v(vDUMMY)}, v0, {srd(sWS)}, s{sU0} offen")
            A.raw(f"s_lshl_b32 s{sU0}, s{sC}, 16"); A.raw("s_mov_b64 exec, 1")
            A.raw(f"buffer_load_dword {v(vDUMMY)}, v0, {srd(sOUT)}, s{sU0} offen")
            A.raw("s_mov_b64 exec, 0xffff")
            A.raw(f"buffer_load_dword {v(vDUMMY)}, v0, {srd(sWS)}, 0 offen")
            A.raw("s_mov_b64 exec, -1")
            g.opt_end(lab)
        cl = g.cfg['codelines']
        lab = g.wave_begin(1)
        A.raw(f"s_getpc_b64 s[{sM0}:{sM1}]")
        A.raw(f"s_lshr_b32 s{sT0}, s2, 3"); A.raw(f"s_mul_i32 s{sT0}, s{sT0}, {cl * 128}")
        A.raw(f"v_lshlrev_b32 {v(t0)}, 7, {L}"); A.raw(f"v_add_u32 {v(t0)}, s{sT0}, {v(t0)}")
        A.raw(f"s_mov_b32 s{sT1}, CODE_BYTES"); A.raw(f"v_min_u32 {v(t0)}, s{sT1}, {v(t0)}")
        A.raw(f"s_mov_b64 exec, {hex((1 << cl) - 1)}")
        A.raw(f"global_load_dword {v(vDUMMY)}, {v(t0)}, s[{sM0}:{sM1}]")
        A.raw("s_mov_b64 exec, -1")
        g.opt_end(lab)
        g.e(f"v_xor_b32 {v(t0)}, s{sW}, {L}")
        for k in range(4):
            g.e(f"v_xor_b32 {v(t1)}, {4 * k}, {v(t0)}"); g.e(f"v_lshlrev_b32 {v(t1)}, 4, {v(t1)}")
            g.e(f"v_add_u32 {v(TMP + 8 + k)}, s{sT3}, {v(t1)}")
            if k: g.e(f"v_add_u32 {v(TMP + 8 + k)}, {k * 4096}, {v(TMP + 8 + k)}")
        for i in range(20):
            g.e(f"s_add_u32 m0, s{sW1K}, {i * 4096}")
            if i >= 4: g.e(f"v_add_u32 {v(TMP + 8 + i % 4)}, 0x4000, {v(TMP + 8 + i % 4)}")
            g.e(f"buffer_load_dwordx4 {v(TMP + 8 + i % 4)}, {srd(sX)}, 0 offen lds", tag="x0", lines=32, lat=330)
        for s_ in range(20): g.free.remove(s_); g.slot[f"x0_{s_}"] = s_
        g.e(f"s_mov_b32 s{sCS}, s{sW3}"); g.e(f"s_mov_b32 s{sCS+1}, s{sW3+1}")
        g.e(f"s_cmp_lt_u32 s2, 224"); g.e(f"s_cselect_b32 s{sCS+2}, s{sW3+2}, 0")
        g.e(f"s_lshr_b32 s{sT0}, s2, 3"); g.e(f"s_lshl_b32 s{sT0}, s{sT0}, 7")
        g.e(f"s_and_b32 s{sT1}, s2, 7"); g.e(f"s_mul_i32 s{sCSO}, s{sT1}, {64 * 3584}"); g.e(f"s_add_u32 s{sCSO}, s{sCSO}, s{sT0}")
        g.e(f"s_lshl_b32 s{sFLAG}, s{sC}, 7"); g.e(f"s_lshl_b32 s{sT0}, s{sJ}, 2"); g.e(f"s_add_u32 s{sFLAG}, s{sFLAG}, s{sT0}")
        g.e(f"s_lshr_b32 s{sT0}, s{sJ}, 1")
        g.e(f"s_and_b32 s{sT1}, s{sT0}, 1"); g.e(f"s_lshl_b32 s{sT1}, s{sT1}, 1")
        g.e(f"s_add_u32 s{sT2}, s{sC}, 1"); g.e(f"s_sub_u32 s{sT2}, s{sT2}, s{sT1}")
        g.e(f"s_lshl_b32 s{sHHS}, s{sT2}, 11"); g.e(f"s_lshl_b32 s{sT0}, s{sT0}, 9"); g.e(f"s_add_u32 s{sHHS}, s{sHHS}, s{sT0}")
        g.e(f"s_and_b32 s{sT0}, s{sJ}, 1"); g.e(f"s_lshl_b32 s{sT0}, s{sT0}, 7"); g.e(f"s_add_u32 s{sHHS}, s{sHHS}, s{sT0}")
        g.e(f"s_add_u32 s{sHHS}, s{sHHS}, {HH}")
        g.e(f"s_cmp_lt_u32 s{sT2}, 32"); g.e(f"s_cselect_b32 s{sHHS}, s{sHHS}, {OOB}")
        lab = g.wave_begin(2)
        A.raw(f"v_mov_b32 {v(TMP)}, 0"); A.raw(f"v_lshlrev_b32 {v(t0)}, 12, {L}"); A.raw("s_mov_b64 exec, 3")
        A.raw(f"buffer_store_dword {v(TMP)}, {v(t0)}, {srd(sWS)}, s{sFLAG} offen sc1")
        A.raw("s_mov_b64 exec, -1")
        for r in range(4): A.raw(f"v_mov_b32 {v(TMP + 4 + r)}, -1")
        A.raw(f"v_and_b32 {v(t0)}, 7, {L}"); A.raw(f"v_lshlrev_b32 {v(t0)}, 4, {v(t0)}")
        A.raw(f"v_bfe_u32 {v(t1)}, {L}, 3, 1"); A.raw(f"v_lshl_add_u32 {v(t0)}, {v(t1)}, 8, {v(t0)}")
        A.raw(f"v_bfe_u32 {v(t1)}, {L}, 4, 1"); A.raw(f"v_lshl_add_u32 {v(t0)}, {v(t1)}, 16, {v(t0)}")
        A.raw("s_mov_b32 exec_hi, 0")
        A.raw(f"buffer_store_dwordx4 {v(TMP + 4, 4)}, {v(t0)}, {srd(sWS)}, s{sHHS} offen sc1")
        A.raw("s_mov_b64 exec, -1")
        g.opt_end(lab)
        g.e(f"s_lshl_b32 s{sT0}, s{sJ}, 7")
        for s_ in (sWQ, sWO, sW1, sW2, sW4):
            g.e(f"s_add_u32 s{s_}, s{s_}, s{sT0}"); g.e(f"s_addc_u32 s{s_+1}, s{s_+1}, 0"); g.e(f"s_sub_u32 s{s_+2}, s{s_+2}, s{sT0}")
        g.e(f"s_mul_i32 s{sT0}, s{sJ}, 448")
        g.e(f"s_add_u32 s{sW3}, s{sW3}, s{sT0}"); g.e(f"s_addc_u32 s{sW3+1}, s{sW3+1}, 0"); g.e(f"s_sub_u32 s{sW3+2}, s{sW3+2}, s{sT0}")
        for s_ in range(16):
            for m in 'qkv':
                g.Q.append(g.uW(m, s_, 'a', allowed=set(range(20, NSLOT))))
                g.stage(f"aW{m}_{s_}", 'a', {'q': 128, 'k': 0, 'v': 64}[m] + 4 * s_, 'QKV', 16)
        g.banks.add('QKV')
        if g.cfg['cold_at'] <= 48: g.Q.insert(g.cfg['cold_at'], dict(name='cold', fn=g.cold, slots=2))
        g.pump(20)
        g.e(f"v_lshrrev_b32 {v(t0)}, 2, {L}")
        g.e(f"v_lshl_add_u32 {v(t0)}, s{sW}, 4, {v(t0)}")
        g.e(f"v_mul_u32_u24 {v(vWDH)}, 3584, {v(t0)}")
        g.e(f"v_and_b32 {v(t1)}, 3, {L}")
        g.e(f"v_lshl_add_u32 {v(vWDH)}, {v(t1)}, 4, {v(vWDH)}")
        g.e(f"v_lshlrev_b32 {v(vL4)}, 2, {L}")
        g.e(f"s_and_b32 s{sT0}, s{sJ}, 1"); g.e(f"s_lshl_b32 s{sODD}, s{sT0}, 6")
        g.e(f"s_cmp_eq_u32 s{sT0}, 0"); g.e(f"s_cselect_b32 s{sHALF}, 384, 0")
        g.e(f"s_mul_i32 s{sRA}, s{sC}, 229376"); g.e(f"s_add_u32 s{sRA}, s{sRA}, {RA}")
        g.e(f"s_lshl_b32 s{sRB}, s{sC}, 16"); g.e(f"s_add_u32 s{sRB}, s{sRB}, {RB}")
        g.e(f"s_lshl_b32 s{sT1}, s{sJ}, 13")
        g.e(f"s_add_u32 s{sSTA}, s{sRA}, s{sT1}"); g.e(f"s_add_u32 s{sSTB}, s{sRB}, s{sT1}")
        g.e(f"s_lshl_b32 s{sSTT}, s{sC}, 13"); g.e(f"s_add_u32 s{sSTT}, s{sSTT}, {STT}")
        g.e(f"s_lshl_b32 s{sT1}, s{sJ}, 1"); g.e(f"s_add_u32 s{sT1}, s{sT1}, s{sNT}"); g.e(f"s_lshl_b32 s{sT1}, s{sT1}, 8")
        g.e(f"s_lshl_b32 s{sT2}, s{sTB}, 12"); g.e(f"s_add_u32 s{sT1}, s{sT1}, s{sT2}"); g.e(f"s_add_u32 s{sSTS}, s{sSTT}, s{sT1}")
        g.e(f"s_mul_i32 s{sT1}, s{sJ}, {224 * 128}"); g.e(f"s_add_u32 s{sT1}, s{sT1}, s{sRA}")
        g.e(f"s_lshl_b32 s{sT2}, s{sODD}, 6"); g.e(f"s_add_u32 s{sH2F}, s{sT1}, s{sT2}")
        g.e(f"s_lshl_b32 s{sT2}, s{sHALF}, 6"); g.e(f"s_add_u32 s{sH2H}, s{sT1}, s{sT2}")
        g.e(f"s_lshl_b32 s{sHXS}, s{sC}, 14"); g.e(f"s_add_u32 s{sHXS}, s{sHXS}, {HX}")
        g.e(f"s_cmp_eq_u32 s{sC}, 0"); g.e(f"s_cselect_b32 s{sHXS}, {OOB}, s{sHXS}")
        g.e(f"s_getreg_b32 s{sMYB}, hwreg(HW_REG_XCC_ID)"); g.e(f"s_and_b32 s{sMYB}, s{sMYB}, 15"); g.e(f"s_or_b32 s{sMYB}, s{sMYB}, 0x80")
        g.e(f"v_and_b32 {v(t0)}, 31, {L}")
        g.e(f"v_lshl_add_u32 {v(t0)}, s{sTB}, 5, {v(t0)}")
        g.e(f"v_lshrrev_b32 {v(t1)}, 5, {L}")
        g.e(f"v_lshlrev_b32 {v(vST)}, 4, {v(t0)}")
        g.e(f"v_lshl_add_u32 {v(vST)}, {v(t1)}, 10, {v(vST)}")
        g.e(f"s_lshl_b32 s{sT0}, s{sNT}, 12"); g.e(f"v_add_u32 {v(vST)}, s{sT0}, {v(vST)}")
        g.e(f"s_lshl_b32 s{sT0}, s{sNT}, 7"); g.e(f"s_add_u32 s{sT0}, s{sT0}, {CST}")
        g.e(f"v_lshlrev_b32 {v(vCSA)}, 4, {v(t1)}"); g.e(f"v_add_u32 {v(vCSA)}, s{sT0}, {v(vCSA)}")
        g.e(f"s_lshl_b32 s{sFLB}, s{sC}, 7")
        g.e(f"s_lshr_b32 s{sT0}, s{sJ}, 2"); g.e(f"s_add_u32 s{sT0}, s{sT0}, 1")
        g.e(f"s_sub_u32 s{sT1}, 64, s{sT0}"); g.e(f"s_bitcmp1_b32 s{sJ}, 1"); g.e(f"s_cselect_b32 s{sT1}, 0, s{sT1}")
        g.e(f"v_subrev_u32 {v(t2)}, s{sT1}, {v(t0)}")
        g.e(f"v_cmp_gt_u32 s[{sM0}:{sM1}], s{sT0}, {v(t2)}")
        g.e(f"v_lshlrev_b32 {v(t2)}, 8, {v(t2)}")
        g.e(f"v_lshl_add_u32 {v(t2)}, {v(t1)}, 4, {v(t2)}")
        g.e(f"s_lshl_b32 s{sT1}, s{sNT}, 6"); g.e(f"v_add_u32 {v(t2)}, s{sT1}, {v(t2)}")
        g.e(f"v_mov_b32 {v(vHHST)}, {OOB}")
        g.e(f"v_cndmask_b32 {v(vHHST)}, {v(vHHST)}, {v(t2)}, s[{sM0}:{sM1}]")
        for r in (vS1, vS2): g.e(f"v_mov_b32 {v(r)}, 0")
        for s_, f in ((sMP, lambda t, gg: t & 1), (sMA, lambda t, gg: 4 * gg <= (t & ~1)), (sMB, lambda t, gg: 4 * gg + 2 <= (t & ~1))):
            m = sum(1 << l for l in range(64) if f(l & 15, l >> 4))
            g.e(f"s_mov_b32 s{s_}, {hex(m & 0xffffffff)}"); g.e(f"s_mov_b32 s{s_+1}, {hex(m >> 32)}")

    def setup_hx(g, vHXST):
        t0, t1, t2 = vT; L = v(vLANE)
        g.e(f"v_and_b32 {v(t0)}, 31, {L}"); g.e(f"v_lshl_add_u32 {v(t0)}, s{sTB}, 5, {v(t0)}"); g.e(f"v_lshrrev_b32 {v(t1)}, 5, {L}")
        g.e(f"v_subrev_u32 {v(t2)}, 48, {v(t0)}")
        g.e(f"v_cmp_gt_u32 s[{sM0}:{sM1}], 16, {v(t2)}")
        g.e(f"v_lshlrev_b32 {v(t2)}, 4, {v(t2)}")
        g.e(f"v_lshl_add_u32 {v(t2)}, {v(t1)}, 8, {v(t2)}")
        g.e(f"s_lshl_b32 s{sT0}, s{sJ}, 1"); g.e(f"s_add_u32 s{sT0}, s{sT0}, s{sNT}"); g.e(f"s_lshl_b32 s{sT0}, s{sT0}, 10")
        g.e(f"s_add_u32 s{sT1}, s{sC}, 1"); g.e(f"s_lshl_b32 s{sT1}, s{sT1}, 14"); g.e(f"s_add_u32 s{sT0}, s{sT0}, s{sT1}")
        g.e(f"s_add_u32 s{sT0}, s{sT0}, {HX}")
        g.e(f"s_cmp_eq_u32 s{sC}, 31"); g.e(f"s_cselect_b32 s{sT0}, {OOB}, s{sT0}")
        g.e(f"v_add_u32 {v(t2)}, s{sT0}, {v(t2)}")
        g.e(f"v_mov_b32 {v(vHXST)}, {OOB}")
        g.e(f"v_cndmask_b32 {v(vHXST)}, {v(vHXST)}, {v(t2)}, s[{sM0}:{sM1}]")
    def setup_hh(g, vHHLD, vHHW):
        t0, t1, t2 = vT; L = v(vLANE)
        g.e(f"s_add_u32 s{sT0}, s{sTB}, 1"); g.e(f"s_lshl_b32 s{sT0}, s{sT0}, 4")
        g.e(f"v_and_b32 {v(t0)}, 15, {L}"); g.e(f"v_lshrrev_b32 {v(t1)}, 4, {L}")
        g.e(f"v_cmp_gt_u32 s[{sM0}:{sM1}], s{sT0}, {L}")
        g.e(f"v_lshlrev_b32 {v(t2)}, 4, {L}")
        g.e(f"s_lshl_b32 s{sT1}, s{sC}, 11"); g.e(f"s_lshl_b32 s{sT2}, s{sW}, 9"); g.e(f"s_add_u32 s{sT1}, s{sT1}, s{sT2}"); g.e(f"s_add_u32 s{sT1}, s{sT1}, {HH}")
        g.e(f"s_mul_i32 s{sT2}, s{sNT}, 31"); g.e(f"s_cmp_eq_u32 s{sC}, s{sT2}"); g.e(f"s_cselect_b32 s{sT1}, {OOB}, s{sT1}")
        g.e(f"v_add_u32 {v(t2)}, s{sT1}, {v(t2)}")
        g.e(f"v_mov_b32 {v(vHHLD)}, {OOB}")
        g.e(f"v_cndmask_b32 {v(vHHLD)}, {v(vHHLD)}, {v(t2)}, s[{sM0}:{sM1}]")
        g.e(f"v_lshl_add_u32 {v(t0)}, s{sW}, 4, {v(t0)}"); g.e(f"v_mul_u32_u24 {v(t0)}, 1088, {v(t0)}")
        g.e(f"s_sub_u32 s{sT1}, 1, s{sTB}"); g.e(f"s_cmp_eq_u32 s{sNT}, 0"); g.e(f"s_cselect_b32 s{sT1}, s{sT1}, 66")
        g.e(f"v_add_u32 {v(t1)}, s{sT1}, {v(t1)}")
        g.e(f"v_lshl_add_u32 {v(vHHW)}, {v(t1)}, 4, {v(t0)}")

    def ones(g):
        for r in range(4): g.e(f"v_mov_b32 {v(XB + r)}, s{sONES}")
    def colsum_strip(g):
        t0, t1, t2 = vT; L = v(vLANE)
        g.ones()
        steps = [g.wstep(f"cs_{s_ // 2}", s_, x=('reg', XB), rel=[f"cs_{s_ // 2}"] if s_ & 1 else []) for s_ in range(4)]
        g.gemm32(steps, {}, ACC0, True, dma=False)
        g.e(f"v_lshrrev_b32 {v(t0)}, 1, {L}")
        g.e(f"v_and_b32 {v(t1)}, 31, {L}"); g.e(f"v_add_u32 {v(t1)}, s{sTB}, {v(t1)}")
        g.e(f"v_cmp_eq_u32 s[{sM0}:{sM1}], 0, {v(t1)}")
        g.e(f"v_mov_b32 {v(t1)}, {OOB}")
        g.e(f"s_lshr_b32 s{sT0}, s2, 3"); g.e(f"s_lshl_b32 s{sT0}, s{sT0}, 8")
        g.e(f"s_and_b32 s{sT1}, s2, 7"); g.e(f"s_mul_i32 s{sT1}, s{sT1}, 7168"); g.e(f"s_add_u32 s{sT0}, s{sT0}, s{sT1}")
        g.e(f"s_lshl_b32 s{sT1}, s{sNT}, 7"); g.e(f"s_add_u32 s{sT0}, s{sT0}, s{sT1}"); g.e(f"s_add_u32 s{sT0}, s{sT0}, {CSP}")
        g.e(f"s_cmp_lt_u32 s2, 224"); g.e(f"s_cselect_b32 s{sT0}, s{sT0}, {OOB}")
        g.e(f"v_cndmask_b32 {v(t0)}, {v(t1)}, {v(t0)}, s[{sM0}:{sM1}]")
        for i in range(4): g.e(f"buffer_store_dwordx4 {v(ACC0 + 4 * i, 4)}, {v(t0)}, {srd(sWS)}, s{sT0} offen offset:{32 * i} sc1", tag="csp", lines=8)
    def publish(g, bits):
        t0, t1, t2 = vT; A = g.A
        lab = g.wave_begin(2)
        A.raw(f"s_lshl_b32 s{sT0}, s{sC}, 3"); A.raw(f"s_add_u32 s{sT0}, s{sT0}, s{sJ}"); A.raw(f"s_or_b32 s{sT1}, s{sMYB}, {bits}")
        A.raw(f"v_mov_b32 {v(t0)}, s{sT1}"); A.raw(f"v_mov_b32 {v(t1)}, 0"); A.raw("s_mov_b64 exec, 1")
        A.raw(f"buffer_store_byte {v(t0)}, {v(t1)}, {srd(sDBG)}, s{sT0} offen sc1"); A.raw("s_mov_b64 exec, -1")
        g.opt_end(lab)
    def check_all(g, mask, stage):
        lab = g.wave_begin(0); ld = f"buffer_load_dword {v(vCHK)}, {v(vL4)}, {srd(sDBG)}, 0 offen sc1"
        if stage == 0: g.e(ld)
        else:
            g.A.raw(f"s_mov_b32 s{sT1}, {hex(mask * 0x01010101)}")
            g.poll(ld, [f"v_and_b32 {v(vT[2])}, s{sT1}, {v(vCHK)}", f"v_cmp_ne_u32 vcc, s{sT1}, {v(vT[2])}"], preloaded=True)
        return lab

    def p1(g, layer):
        A = g.A; t0, t1, t2 = vT; L = v(vLANE); P = 'ab'[layer]; cfg = g.cfg
        g.c(f"===== P1 layer {layer}: LN + QKV (16x16x32, wave = head) + attention =====")
        def acc(m, b):
            return WB + 4 * 'qkv'.index(m) if b == 'cs' else BIG + {'q': -4, 'k': 16, 'v': 36}[m] + 4 * b
        XF = [184, 204]; WF = [224, 236]; XA = 248
        first = layer == 0
        blocks = [1, 2, 3, 4, 0] if first else [1, 2, 3, 4]
        def wdst(m, s_): return g.dest[f"{P}W{m}_{s_}"]
        R = lambda k, n, c=1: (v if k == 'v' else a)(n, c)
        def rd_w(m, s_): g.force_move(f"{P}W{m}_{s_}")
        def rd_x(b, s_):
            d = XF[s_ & 1] + 4 * b
            if first:
                r, imm = XA + (s_ & 3) + 4 * (b >> 2), (b & 3) * 16384 + (s_ >> 2) * 256
                g.e(f"ds_read_b128 {v(d, 4)}, {v(r)} offset:{imm}", tag="x0_0")
            else:
                u = f"{P}1X_{s_}"
                g.e(f"ds_read_b128 {v(d, 4)}, {v(vXR[0])} offset:{g.slot[u] * 4096 + (b - 1) * 256}", tag=u)
        vSA = TMP + 8; XS = [TMP, TMP + 4]; vA = TMP + 9; vB = TMP + 10
        def rd_s(s_):
            u = f"{P}1X_{s_}"
            g.e(f"ds_read_b128 {v(XS[s_ & 1], 4)}, {v(vSA)} offset:{g.slot[u] * 4096}", tag=u); g.release(u)
        def reads(s_):
            l = [lambda: (rd_w('q', s_), rd_x(1, s_)), lambda: rd_w('k', s_), lambda: rd_w('v', s_)]
            l += [(lambda b=b: rd_x(b, s_)) for b in blocks[1:]]
            if not first: l.append(lambda: rd_s(s_))
            return l
        def units(s_): return [f"{P}W{m}_{s_}" for m in 'qkv'] + ([] if first else [f"{P}1X_{s_}"])
        def dots(x, n):
            for r in range(n):
                g.e(f"v_dot2_f32_bf16 {v(vS1)}, {v(x + r)}, s{sONES}, {v(vS1)}")
                g.e(f"v_dot2_f32_bf16 {v(vS2)}, {v(x + r)}, {v(x + r)}, {v(vS2)}")
        def reduce_stats():
            g.e(f"v_permlane32_swap_b32 {v(vS1)}, {v(vS2)}")
            g.e(f"v_add_f32 {v(t0)}, {v(vS1)}, {v(vS2)}")
            g.e(f"v_mov_b32 {v(t1)}, {v(t0)}")
            g.e(f"v_permlane16_swap_b32 {v(t0)}, {v(t1)}")
            g.e(f"v_add_f32 {v(t0)}, {v(t0)}, {v(t1)}")
            g.e(f"v_mov_b32 {v(vS1)}, 0"); g.e(f"v_mov_b32 {v(vS2)}, 0")
        def mu_r(addr):
            g.e(f"v_mul_f32 {v(t0)}, {fl(-1.0 / 512)}, {v(t0)}")
            g.e(f"v_mul_f32 {v(t1)}, {fl(1.0 / 512)}, {v(t1)}")
            g.e(f"v_fma_f32 {v(t1)}, -{v(t0)}, {v(t0)}, {v(t1)}")
            g.e(f"v_max_f32 {v(t1)}, 0, {v(t1)}")
            g.e(f"v_add_f32 {v(t1)}, {fl(EPS)}, {v(t1)}")
            g.e(f"v_rsq_f32 {v(t1)}, {v(t1)}")
            g.e(f"ds_write_b32 {v(addr)}, {v(t0)} offset:{NM - MISC}")
            g.e(f"ds_write_b32 {v(addr)}, {v(t1)} offset:{RR - MISC}")
        def own_stats():
            reduce_stats()
            g.e(f"v_mov_b32 {v(t1)}, {v(t0)}")
            g.e(f"v_permlane32_swap_b32 {v(t0)}, {v(t1)}")
            mu_r(vA)
        def halo_partial():
            reduce_stats()
            g.e(f"v_lshrrev_b32 {v(t1)}, 5, {L}"); g.e(f"v_lshl_add_u32 {v(t1)}, {v(t1)}, 6, {v(vB)}")
            g.e(f"s_lshl_b32 s{sT0}, s{sW}, 7"); g.e(f"v_add_u32 {v(t1)}, s{sT0}, {v(t1)}")
            g.e(f"ds_write_b32 {v(t1)}, {v(t0)} offset:{HS - MISC}")
        g.e(f"v_and_b32 {v(vB)}, 15, {L}"); g.e(f"v_lshlrev_b32 {v(vB)}, 2, {v(vB)}"); g.e(f"v_add_u32 {v(vB)}, {MISC}, {v(vB)}")
        g.e(f"s_lshl_b32 s{sT0}, s{sW}, 6"); g.e(f"s_add_u32 s{sT0}, s{sT0}, 64"); g.e(f"v_add_u32 {v(vA)}, s{sT0}, {v(vB)}")
        HB = ACC1
        GS = 2
        def grp(s_): return g.unmoved([u for k in range(s_, min(16, s_ + GS)) for u in units(k)])
        if first:
            g.barrier(extra_tags=["x0"])
            g.stamp("x_landed")
            g.ones()
            g.e(f"s_add_u32 s{sT0}, s{sW}, 1"); g.e(f"s_lshl_b32 s{sT0}, s{sT0}, 14")
            for k in range(4): g.e(f"v_add_u32 {v(TMP + k)}, s{sT0}, {v(XA + k)}")
            for s_ in range(16): g.e(f"ds_read_b128 {v(BIG + 4 * s_, 4)}, {v(TMP + (s_ & 3))} offset:{256 * (s_ >> 2)}", tag="x0_0")
            for q in range(4):
                dots(BIG + 16 * q, 16)
                if cfg['xs_bar'] and q in (1, 3):
                    nd = [f"aW{m}_{k}" for k in range(q + 1 + (q >> 1) * 2) for m in 'qkv']
                    g.barrier(g.unmoved(nd)); g.auto(8); g.moves(64)
            own_stats()
            g.e(f"s_lshl_b32 s{sT0}, s{sW}, 8")
            for i in range(4):
                g.e(f"v_add_u32 {v(TMP + i)}, s{sT0}, {v(XA + i)}")
                g.e(f"ds_read_b128 {v(HB + 4 * i, 4)}, {v(TMP + i)}", tag="x0_0")
            g.e(f"v_and_b32 {v(t2)}, 31, {L}"); g.e(f"v_lshl_add_u32 {v(t2)}, s{sTB}, 5, {v(t2)}")
            g.e(f"v_add_u32 {v(t2)}, 16, {v(t2)}"); g.e(f"v_lshlrev_b32 {v(t2)}, 10, {v(t2)}")
            g.e(f"v_lshrrev_b32 {v(t1)}, 5, {L}"); g.e(f"v_lshl_add_u32 {v(t2)}, {v(t1)}, 3, {v(t2)}")
            g.e(f"s_lshl_b32 s{sT0}, s{sJ}, 1"); g.e(f"s_add_u32 s{sT0}, s{sT0}, s{sNT}"); g.e(f"s_lshl_b32 s{sT0}, s{sT0}, 2")
            g.e(f"v_and_b32 {v(t1)}, 15, {L}"); g.e(f"v_xor_b32 {v(t1)}, s{sT0}, {v(t1)}")
            for i in range(4):
                g.e(f"v_xor_b32 {v(TMP + 4)}, {i}, {v(t1)}"); g.e(f"v_lshl_add_u32 {v(TMP + 4)}, {v(TMP + 4)}, 4, {v(t2)}")
                g.e(f"ds_read_b64 {v(ACC0 + 2 * i, 2)}, {v(TMP + 4)}")
            dots(HB, 16); halo_partial()
            for i in range(8):
                g.e(f"v_lshlrev_b32 {v(RES + 2 * i)}, 16, {v(ACC0 + i)}"); g.e(f"v_and_b32 {v(RES + 2 * i + 1)}, 0xffff0000, {v(ACC0 + i)}")
            g.stamp("x_stats")
            g.barrier(grp(0))
            g.publish(0)
        else:
            g.e(f"s_lshl_b32 s{sT0}, s{sW}, 8"); g.e(f"v_add_u32 {v(vSA)}, s{sT0}, {v(vXR[0])}")
            g.barrier(grp(0))
            lab = g.wave_begin(0)
            A.raw(f"v_mov_b32 {v(t0)}, 1"); A.raw(f"v_mov_b32 {v(t1)}, {HFLAG}"); A.raw("s_mov_b64 exec, 1")
            A.raw(f"buffer_store_dword {v(t0)}, {v(t1)}, {srd(sWS)}, s{sFLAG} offen sc1"); A.raw("s_mov_b64 exec, -1")
            g.opt_end(lab)
        for r in reads(0): r()
        w0c = [f"s_cmp_eq_u32 s{sC}, 0", f"s_cselect_b32 s{sT0}, 1, s{sW}", f"s_cmp_lg_u32 s{sT0}, 0", "s_cbranch_scc1"]
        for s_ in range(16):
            nxt = []
            if s_ + 1 < 16:
                nxt = reads(s_ + 1)
                if (s_ + 1) % GS == 0:
                    nxt = [lambda s_=s_: (g.auto_until(grp(s_ + 1)), g.barrier(grp(s_ + 1)))] + nxt
            jobs = [(m, b) for b in blocks for m in 'qkv' if not (m == 'q' and b == 0)]
            if first: jobs += [(m, 'cs') for m in 'qkv']
            for n_, (m, b) in enumerate(jobs):
                k, n = wdst(m, s_)
                cc = "0" if s_ == 0 else v(acc(m, b), 4)
                ab = [R(k, n, 4), v(XB if b == 'cs' else XF[s_ & 1] + 4 * b, 4)]
                if m == 'v': ab.reverse()
                g.e(f"v_mfma_f32_16x16x32_bf16 {v(acc(m, b), 4)}, {ab[0]}, {ab[1]}, {cc}")
                if n_ >= 1 and nxt: nxt.pop(0)()
                elif n_ >= 1: g.moves(2)
                if n_ % 3 == 2: g.auto(1)
            while nxt: nxt.pop(0)()
            if not first and not cfg.get('nodots'): dots(XS[s_ & 1], 4)
            if not first and cfg.get('fine') == 5 and s_ % 2 == 1: g.stamp(f's{s_}')
            if first and s_ == cfg['chk_at']: g.opt_end(g.check_all(0x80, 0))
            if first and s_ == 15:
                lab = g.check_all(0x80, 1)
                A.raw(f"s_mul_i32 s{sT0}, s{sMYB}, 0x01010101"); A.raw(f"v_and_b32 {v(t2)}, 0x8f8f8f8f, {v(vCHK)}")
                A.raw(f"v_cmp_eq_u32 vcc, s{sT0}, {v(t2)}")
                A.raw(f"s_lshl_b32 s{sT0}, s{sC}, 1")
                A.raw(f"s_lshr_b64 s[{sM0}:{sM1}], vcc, s{sT0}")
                A.raw(f"s_and_b32 s{sT0}, s{sM0}, 3"); A.raw(f"s_cmp_eq_u32 s{sT0}, 3")
                A.raw(f"s_cselect_b32 s{sMODE}, {0 if cfg.get('slow') else 1}, 0")
                g.opt_end(lab)
            if not first and s_ == cfg['halo_at']:
                lab = g.opt_begin(w0c)
                A.raw(f"s_add_u32 s{sT0}, s{sFLB}, {HFLAG - 128}"); A.raw("s_mov_b64 exec, 0xff")
                g.e(f"buffer_load_dword {v(vCHK)}, {v(vL4)}, {srd(sWS)}, s{sT0} offen sc1"); A.raw("s_mov_b64 exec, -1")
                g.opt_end(lab)
            if not first and s_ == cfg['halo_at'] + cfg['halo_gap']:
                lab = g.opt_begin(w0c)
                A.raw(f"s_add_u32 s{sT0}, s{sFLB}, {HFLAG - 128}"); A.raw("s_mov_b64 exec, 0xff")
                g.poll(f"buffer_load_dword {v(vCHK)}, {v(vL4)}, {srd(sWS)}, s{sT0} offen sc1", [f"v_cmp_ne_u32 vcc, 1, {v(vCHK)}"], preloaded=True)
                A.raw("s_mov_b64 exec, -1")
                g.opt_end(lab)
            if not first and s_ == cfg['halo_at'] + cfg['halo_gap'] + 1 + (cfg['halo_at'] + cfg['halo_gap'] & 1):
                g.Q[0:0] = [dict(name=f"halo_{u}", voff=vXD, srd=sWS, sbase=sHXS, goff=u * 4096, aux="sc1", allowed={u}) for u in range(4)]
            if not first and s_ == cfg.get('t3o_at', 5): g.touch3(sWO, 16, 1024, 1)
            if s_ == cfg['wo_at']:
                al = set(range(20, NSLOT)) if first else RING
                for m, bank, base in (('o', 'A1', 128), ('1', 'A0', 0), ('2', 'A1b', 128), ('3a', 'A0b', 0)):
                    for u in range(16):
                        g.Q.append(g.uW(m, u, P, allowed=al if m in 'o1' else al & RING17))
                        g.stage(f"{P}W{m}_{u}", 'a', base + 8 * u, bank)
                    if m == 'o':
                        if first and cfg['cold_at'] > 48: g.Q.append(dict(name='cold', fn=g.cold, slots=2))
                        g.Q.append(dict(name='batch', fn=lambda: g.batch2(layer)))
        g.stamp(f"p1_{layer}_main")
        ok = g.budget(cfg['attn_dma'])
        g.banks.add('A1')
        if first: g.banks.add('A0')
        SEL = WB + 12
        g.e(f"v_mov_b32 {v(t2)}, 0x0c0c0c0c")
        for n_, (lo, hi, m_) in enumerate(((0x0c0c0100, 0x01000c0c, sMA), (0x0c0c0302, 0x03020c0c, sMB))):
            g.e(f"v_mov_b32 {v(t0)}, {hex(lo)}"); g.e(f"v_mov_b32 {v(t1)}, {hex(hi)}")
            g.e(f"v_cndmask_b32 {v(t0)}, {v(t0)}, {v(t1)}, s[{sMP}:{sMP+1}]")
            g.e(f"v_cndmask_b32 {v(SEL + n_)}, {v(t2)}, {v(t0)}, s[{m_}:{m_+1}]")
            g.e(f"v_cndmask_b32 {v(SEL + 2 + n_)}, {v(t0)}, {v(t2)}, s[{m_}:{m_+1}]")
        if first:
            g.e(f"v_and_b32 {v(t2)}, 48, {L}"); g.e(f"s_lshl_b32 s{sT0}, s{sW}, 6"); g.e(f"s_add_u32 s{sT0}, s{sT0}, {CST}")
            g.e(f"v_add_u32 {v(t2)}, s{sT0}, {v(t2)}")
            for mi in range(2): g.e(f"ds_write_b128 {v(t2)}, {v(WB + 4 * mi, 4)} offset:{256 * mi}")
            g.e(f"s_sub_u32 s{sT0}, s{sT0}, {MISC}"); g.e(f"v_add_u32 {v(t2)}, s{sT0}, {v(vB)}")
            g.e(f"ds_write_b32 {v(t2)}, {v(WB + 8)} offset:512")
            for s_ in range(20): g.release(f"x0_{s_}")
        else:
            own_stats()
            hn = [f"halo_{u}" for u in range(4)]
            g.barrier(hn)
            g.stamp(f"p1_{layer}_haloin")
            g.e(f"v_and_b32 {v(t0)}, 15, {L}"); g.e(f"v_lshlrev_b32 {v(vXR[1])}, 4, {v(t0)}")
            g.e(f"v_lshrrev_b32 {v(t1)}, 4, {L}"); g.e(f"v_lshl_add_u32 {v(vXR[1])}, {v(t1)}, 8, {v(vXR[1])}")
            g.e(f"s_lshl_b32 s{sT0}, s{sW}, 12"); g.e(f"v_add_u32 {v(vSA)}, s{sT0}, {v(vXR[1])}")
            for i in range(4): g.e(f"ds_read_b128 {v(HB + 4 * i, 4)}, {v(vSA)} offset:{i * 1024}", tag="halo_0")
            def rdh(s_): g.e(f"ds_read_b128 {v(XF[0] + 4 * (s_ % 8), 4)}, {v(vXR[1])} offset:{s_ * 1024}", tag="halo_0")
            for s_ in range(6): rdh(s_)
            dots(HB, 16); halo_partial()
            for s_ in range(16):
                if s_ + 6 < 16: rdh(s_ + 6)
                for m in 'kv':
                    cc = "0" if s_ == 0 else v(acc(m, 0), 4)
                    ab = [a(wdst(m, s_)[1], 4), v(XF[0] + 4 * (s_ % 8), 4)]
                    if m == 'v': ab.reverse()
                    g.e(f"v_mfma_f32_16x16x32_bf16 {v(acc(m, 0), 4)}, {ab[0]}, {ab[1]}, {cc}")
                g.auto(1, ok); g.moves(3)
            for u in hn: g.release(u)
            g.banks.add('A0')
        g.barrier(lds_all=True)
        g.stamp(f"p1_{layer}_halo")
        RN = 64; CS = WB; NT_, RT_ = 184, 204; SS = 224; SA, SB, U = 96, 100, 104; PP, OA, PK = 184, 200, 48
        g.e(f"v_add_u32 {v(vSA)}, {HS - MISC}, {v(vB)}")
        for i in range(4): g.e(f"ds_read2_b32 {v(TMP + 2 * i, 2)}, {v(vSA)} offset0:{32 * i} offset1:{32 * i + 16}")
        for b in range(1, 5): g.e(f"ds_read2_b32 {v(RN + 2 * b, 2)}, {v(vB)} offset0:{16 * b} offset1:{128 + 16 * b}")
        g.e(f"v_and_b32 {v(t2)}, 48, {L}"); g.e(f"v_add_u32 {v(vA)}, {MISC}, {v(t2)}")
        g.e(f"s_lshl_b32 s{sT0}, s{sW}, 6"); g.e(f"s_add_u32 s{sT0}, s{sT0}, {CST - MISC}")
        g.e(f"v_add_u32 {v(t2)}, s{sT0}, {v(vA)}"); g.e(f"v_add_u32 {v(vSA)}, s{sT0}, {v(vB)}")
        if not first:
            for mi in range(2): g.e(f"ds_read_b128 {v(CS + 4 * mi, 4)}, {v(t2)} offset:{256 * mi}")
            g.e(f"ds_read_b32 {v(CS + 8)}, {v(vSA)} offset:512")
        def rdT(b):
            g.e(f"ds_read_b128 {v(NT_ + 4 * b, 4)}, {v(vA)} offset:{NM - MISC + 64 * b}")
            g.e(f"ds_read_b128 {v(RT_ + 4 * b, 4)}, {v(vA)} offset:{RR - MISC + 64 * b}")
        g.e(f"v_pk_add_f32 {v(TMP, 2)}, {v(TMP, 2)}, {v(TMP + 2, 2)}")
        g.e(f"v_pk_add_f32 {v(TMP + 4, 2)}, {v(TMP + 4, 2)}, {v(TMP + 6, 2)}")
        g.e(f"v_add_f32 {v(t0)}, {v(TMP)}, {v(TMP + 4)}")
        g.e(f"v_add_f32 {v(t1)}, {v(TMP + 1)}, {v(TMP + 5)}")
        mu_r(vB)
        g.e(f"v_mov_b32 {v(RN)}, {v(t1)}"); g.e(f"v_mov_b32 {v(RN + 1)}, {v(t0)}")
        for b in (1, 2, 3, 4, 0): rdT(b)
        g.e(f"v_bfe_u32 {v(t0)}, {L}, 4, 1"); g.e(f"v_lshrrev_b32 {v(t1)}, 5, {L}"); g.e(f"v_lshl_add_u32 {v(t0)}, {v(t0)}, 1, {v(t1)}")
        g.e(f"v_lshl_add_u32 {v(t0)}, {v(t0)}, 6, {v(vB)}")
        cq, nmx = TMP + 12, TMP + 13
        g.e(f"ds_read_b32 {v(cq)}, {v(t0)} offset:{RR - MISC + 64}")
        g.auto(2, ok)
        g.fstamp('at_setup')
        def fix(m, b):
            r = acc(m, b)
            for h in (0, 2):
                if m == 'v': g.e(f"v_pk_fma_f32 {v(r + h, 2)}, {v(NT_ + 4 * b + h, 2)}, {v(CS + 8, 2)}, {v(r + h, 2)} op_sel_hi:[1,0,1]")
                else: g.e(f"v_pk_fma_f32 {v(r + h, 2)}, {v(CS + 4 * (m == 'k') + h, 2)}, {v(RN + 2 * b, 2)}, {v(r + h, 2)} op_sel:[0,1,0] op_sel_hi:[1,1,1]")
            for h in (0, 2):
                if m == 'v': g.e(f"v_pk_mul_f32 {v(r + h, 2)}, {v(r + h, 2)}, {v(RT_ + 4 * b + h, 2)}")
                if m == 'k': g.e(f"v_pk_mul_f32 {v(r + h, 2)}, {v(r + h, 2)}, {v(RN + 2 * b, 2)} op_sel_hi:[1,0]")
            g.auto(1, ok)
        def cvt(m, b):
            r = acc(m, b)
            g.e(f"v_cvt_pk_bf16_f32 {v(r)}, {v(r)}, {v(r + 1)}"); g.e(f"v_cvt_pk_bf16_f32 {v(r + 1)}, {v(r + 2)}, {v(r + 3)}")
        for b in (1, 2, 3, 4): fix('q', b); fix('k', b)
        fix('k', 0)
        for b in (1, 2, 3, 4, 0): fix('v', b)
        g.fstamp('at_fix')
        if cfg['attn_bar']: g.barrier(); g.auto(2, ok)
        def smm(kb, qb):
            g.e(f"v_mfma_f32_16x16x16_bf16 {v(SS + 8 * (qb - 1) + 4 * (kb != qb), 4)}, {v(acc('k', kb), 2)}, {v(acc('q', qb), 2)}, 0")
        def sel(b):
            S_, Pv = SS + 8 * (b - 1), SS + 8 * (b - 1) + 4
            for o, m_, x in ((0, sMA, SA), (2, sMB, SB)):
                g.e(f"v_cndmask_b32 {v(S_ + o)}, {v(S_ + o)}, {v(S_ + o + 1)}, s[{sMP}:{sMP+1}]")
                g.e(f"v_cndmask_b32 {v(Pv + o)}, {v(Pv + o)}, {v(Pv + o + 1)}, s[{sMP}:{sMP+1}]")
            for o, m_, x in ((0, sMA, SA), (2, sMB, SB)):
                g.e(f"v_cndmask_b32 {v(x + b - 1)}, {v(Pv + o)}, {v(S_ + o)}, s[{m_}:{m_+1}]")
        cvt('k', 0); cvt('k', 1); cvt('q', 1); cvt('k', 2)
        smm(0, 1); cvt('q', 2); smm(1, 1); cvt('k', 3)
        smm(1, 2); cvt('q', 3); smm(2, 2); cvt('k', 4)
        smm(2, 3); cvt('q', 4); smm(3, 3); cvt('v', 0)
        smm(3, 4); cvt('v', 1); smm(4, 4); cvt('v', 2)
        lab = g.opt_begin([f"s_cmp_lg_u32 s{sC}, 0", "s_cbranch_scc1"])
        for r in range(4): A.raw(f"v_mov_b32 {v(SS + 4 + r)}, {fl(-1e30)}")
        g.opt_end(lab)
        sel(1); cvt('v', 3); cvt('v', 4); sel(2); sel(3); sel(4)
        g.e(f"v_mul_f32 {v(cq)}, {fl(0.25 * math.log2(math.e))}, {v(cq)}")
        g.auto(1, ok)
        for X in (SA, SB):
            g.e(f"v_permlane32_swap_b32 {v(X)}, {v(X + 1)}"); g.e(f"v_permlane32_swap_b32 {v(X + 2)}, {v(X + 3)}")
        for X in (SA, SB):
            g.e(f"v_permlane16_swap_b32 {v(X)}, {v(X + 2)}"); g.e(f"v_permlane16_swap_b32 {v(X + 1)}, {v(X + 3)}")
        g.fstamp('at_qk')
        g.e(f"v_max3_f32 {v(t0)}, {v(SA)}, {v(SA + 2)}, {v(SA + 1)}")
        g.e(f"v_max3_f32 {v(t1)}, {v(SA + 3)}, {v(SB)}, {v(SB + 2)}")
        g.e(f"v_max3_f32 {v(t0)}, {v(t0)}, {v(SB + 1)}, {v(SB + 3)}")
        g.e(f"v_max_f32 {v(t0)}, {v(t0)}, {v(t1)}")
        g.e(f"v_mul_f32 {v(nmx)}, -{v(t0)}, {v(cq)}")
        for p in range(4):
            g.e(f"v_pk_fma_f32 {v(SA + 2 * p, 2)}, {v(SA + 2 * p, 2)}, {v(cq, 2)}, {v(cq, 2)} op_sel:[0,0,1] op_sel_hi:[1,0,1]")
        for w_ in range(8): g.e(f"v_exp_f32 {v(SA + w_)}, {v(SA + w_)}")
        g.auto(1, ok)
        g.e(f"v_pk_add_f32 {v(cq, 2)}, {v(SA, 2)}, {v(SA + 2, 2)}")
        g.e(f"v_pk_add_f32 {v(cq + 2, 2)}, {v(SA + 4, 2)}, {v(SA + 6, 2)}")
        g.e(f"v_pk_add_f32 {v(cq, 2)}, {v(cq, 2)}, {v(cq + 2, 2)}")
        g.e(f"v_add_f32 {v(cq)}, {v(cq)}, {v(cq + 1)}")
        g.e(f"v_rcp_f32 {v(cq)}, {v(cq)}")
        for p in range(4): g.e(f"v_pk_mul_f32 {v(SA + 2 * p, 2)}, {v(SA + 2 * p, 2)}, {v(cq, 2)} op_sel_hi:[1,0]")
        for i in (0, 2, 1, 3): g.e(f"v_cvt_pk_bf16_f32 {v(U + i)}, {v(SA + i)}, {v(SB + i)}")
        g.e(f"v_permlane16_swap_b32 {v(U)}, {v(U + 2)}"); g.e(f"v_permlane16_swap_b32 {v(U + 1)}, {v(U + 3)}")
        g.e(f"v_permlane32_swap_b32 {v(U)}, {v(U + 1)}"); g.e(f"v_permlane32_swap_b32 {v(U + 2)}, {v(U + 3)}")
        g.fstamp('at_sm')
        vSTO = vA
        g.e(f"v_bfe_u32 {v(t0)}, {L}, 4, 1"); g.e(f"v_and_b32 {v(t1)}, 15, {L}"); g.e(f"v_lshlrev_b32 {v(t1)}, 4, {v(t1)}")
        g.e(f"v_lshl_add_u32 {v(t1)}, {v(t0)}, 10, {v(t1)}"); g.e(f"v_lshrrev_b32 {v(t0)}, 5, {L}"); g.e(f"v_lshl_add_u32 {v(t1)}, {v(t0)}, 8, {v(t1)}")
        g.e(f"s_lshl_b32 s{sT0}, s{sW}, 11"); g.e(f"v_add_u32 {v(vSTO)}, s{sT0}, {v(t1)}")
        def pb(b):
            for n_ in range(4): g.e(f"v_perm_b32 {v(PP + 4 * (b - 1) + n_)}, {v(U + b - 1)}, {v(U + b - 1)}, {v(SEL + n_)}")
        pb(1)
        for b in (1, 2, 3, 4):
            if b < 4: pb(b + 1)
            o = OA + 4 * (b - 1)
            g.e(f"v_mfma_f32_16x16x16_bf16 {v(o, 4)}, {v(acc('v', b), 2)}, {v(PP + 4 * (b - 1), 2)}, 0")
            g.e(f"v_mfma_f32_16x16x16_bf16 {v(o, 4)}, {v(acc('v', b - 1), 2)}, {v(PP + 4 * (b - 1) + 2, 2)}, {v(o, 4)}")
        g.fstamp('at_pv')
        for h in (0, 1):
            for q in range(4): g.e(f"v_cvt_pk_bf16_f32 {v(PK + 4 * h + q)}, {v(OA + 8 * h + 2 * q)}, {v(OA + 8 * h + 2 * q + 1)}")
            g.e(f"v_permlane32_swap_b32 {v(PK + 4 * h)}, {v(PK + 4 * h + 2)}"); g.e(f"v_permlane32_swap_b32 {v(PK + 4 * h + 1)}, {v(PK + 4 * h + 3)}")
            g.e(f"buffer_store_dwordx4 {v(PK + 4 * h, 4)}, {v(vSTO)}, {srd(sWS)}, s{sSTA} offen offset:{512 * h}{' sc1' if first and cfg['first_sc1'] else ''}", tag="st")
        g.stamp(f"p1_{layer}_attn")
        for u in g.Q:
            if u.get('allowed'): u['allowed'] = RING if u['name'][2] in 'o1' else RING17
        g.force(['batch', 'cold'])
        def mid():
            g.setup_xr32()
        return g.handoff(6 * layer + 1, ["st"], mid, need=["cs_0", "cs_1"] if first else [])

    def variants(g, sreg, body):
        A = g.A; l1 = A.newlabel('V1'); l2 = A.newlabel('VE')
        g.e(f"s_cmp_lg_u32 s{sreg}, 0"); g.e(f"s_cbranch_scc1 {l1}"); g.gid += 1
        keys = ('M', 'banks', 'Q', 'free', 'slot', 'pend_free', 'visible', 'now', 'mfree', 'fifo', 'flast', 'ta', 'lfree', 'nlines')
        cp = lambda x: [dict(u) for u in x] if isinstance(x, list) and x and isinstance(x[0], dict) else copy.copy(x)
        st0 = (copy.deepcopy(A.vm), copy.deepcopy(A.lg), {k: cp(getattr(g, k)) for k in keys})
        ends = []
        for alt in (0, 1):
            A.vm, A.lg = copy.deepcopy(st0[0]), copy.deepcopy(st0[1])
            for k in keys: setattr(g, k, cp(st0[2][k]))
            if alt: A.label(l1)
            A.begin_var(g.gid, alt, opt=False)
            n0 = sum(1 for x in A.L if x.op == 's_barrier')
            body(alt)
            A.wait_lg_all()
            if alt == 0: A.raw(f"s_branch {l2}")
            A.end_var()
            ends.append(([o['tag'] for o in A.vm], [u['name'] for u in g.Q], sorted(g.slot.items()), sorted(g.pend_free), [(m['u'], m['k']) for m in g.M],
                         sum(1 for x in A.L if x.op == 's_barrier') - n0))
        assert ends[0] == ends[1], ends
        A.label(l2)
    def wstep(g, wu, s_, **k):
        return dict(w=(vWR, lambda: g.slot[wu] * 4096 + (s_ & 1) * 2048), wu=wu, half=s_ & 1, **k)

    def small(g, layer, which):
        A = g.A; P = 'ab'[layer]; t0, t1, t2 = vT; cfg = g.cfg
        mat = {2: 'o', 3: '1', 4: '2'}[which]; xb = {2: sRA, 3: sRB, 4: sRA}[which]
        g.c(f"===== P{which} layer {layer} =====")
        XP = f"{P}{which}"; g.fineon = layer == 1 and not cfg.get('fine6')
        if which == 4:
            assert all(s_ in g.free for s_ in range(17)), g.free
            for s_ in range(17): g.free.remove(s_); g.slot[f"{XP}pad_{s_}"] = s_
            xs = [g.uX(xb, u, XP, lds=u * 4 * 1088 + 32) for u in (0, 4, 1, 5, 2, 6, 3, 7, 8, 12, 9, 13, 10, 14, 11, 15)]
        else:
            xs = [g.uX(xb, u, XP, allowed={u}) for u in range(16)]
        if which == 3: xs[10:10] = g.uS(XP)
        mine = [u for u in g.Q if u['name'].startswith(f"{P}W{mat}_")]; rest = [u for u in g.Q if u not in mine]
        g.Q = mine + xs + rest
        for m, n in {2: [('3b', 16)], 3: [('3c', 16)], 4: [('3d', 8)]}[which]:
            for u in range(n):
                g.Q.append(g.uW(m, u, P, allowed=RING17))
                if m == '3b': g.stage(f"{P}W3b_{u}", 'a', 128 + 8 * u, 'A1c')
        H, vHHLD, vHHW = TMP, TMP + 4, TMP + 5
        hload = f"buffer_load_dwordx4 {v(H, 4)}, {v(vHHLD)}, {srd(sWS)}, s{sT3} offen sc1"
        if which == 4:
            k = max(n_ for n_, u in enumerate(g.Q) if u['name'].startswith(f"{XP}X_")) + 1
            g.Q.insert(k, dict(name='hh', fn=lambda: (g.e(f"s_mov_b32 s{sT3}, {layer * 0x10000}"), g.e(hload, lat=800))))
        g.pump(len(mine) + cfg['xfirst'])
        if which == 2 and layer == 0: g.colsum_strip()
        if which == 3 and layer == 0:
            g.e(f"v_add_u32 {v(t0)}, {HS - CST}, {v(vCSA)}")
            for i in range(8): g.e(f"ds_read_b128 {v(BIG + 4 * i, 4)}, {v(t0)} offset:{256 * (i >> 2) + 32 * (i & 3)}")
            for q in range(8): g.e(f"v_pk_add_f32 {v(BIG + 2 * q, 2)}, {v(BIG + 2 * q, 2)}, {v(BIG + 16 + 2 * q, 2)}")
            for i in range(4): g.e(f"ds_write_b128 {v(vCSA)}, {v(BIG + 4 * i, 4)} offset:{768 + 32 * i}")
        dsh = [1, -1, 2, -2]
        acc = {2: RES, 3: ACC0, 4: ACC1}[which]
        mine_n = set(u['name'] for u in mine)
        def hook():
            if which == cfg['w4_cold'] and layer == 0: g.cold_w4()
            if which == 4 and not (layer == 0 and cfg['w4_cold'] >= 4): g.touch3(sW4, 56, 1024, 3)
        def body(tb):
            order = list(range(32))
            if which == 4:
                order = [s_ for gg in ((1, 3, 0, 2), (0, 2, 1, 3))[tb] for s_ in range(8 * gg, 8 * gg + 8)]
            steps = []
            for n_, s_ in enumerate(order):
                wu = f"{P}W{mat}_{s_ // 2}"; xu = f"{XP}X_{s_ // 2}"
                st = g.wstep(wu, s_, xu=xu, rel=[])
                if which == 4: st['x'] = ('lds', lambda s_=s_: s_ * 2176 + 32 - 16 * dsh[s_ // 8], None); st['xu'] = f"{XP}pad_0"
                else: st['x'] = ('lds', lambda xu=xu, s_=s_: g.slot[xu] * 4096 + (s_ & 1) * 2048, None)
                if s_ & 1:
                    st['rel'].append(wu)
                    if which != 4: st['rel'].append(xu)
                if which == 4 and n_ == 31: st['rel'] += [f"{XP}pad_{k}" for k in range(17)]
                steps.append(st)
            groups = {}
            if which == 4:
                for s0, us in ((0, (0, 4, 1, 5)), (4, (2, 6, 3, 7)), (8, (8, 12, 9, 13)), (12, (10, 14, 11, 15)), (16, ())):
                    groups[s0] = [f"{XP}X_{u}" for u in us] + ([f"{P}W{mat}_{u}" for u in range(16)] if s0 == 0 else [])
            else:
                gs = cfg['gs']
                for n_, s0 in enumerate(gs):
                    s1 = gs[n_ + 1] if n_ + 1 < len(gs) else 32
                    groups[s0] = [f"{P}W{mat}_{u}" for u in range(s0 // 2, s1 // 2)] + [f"{XP}X_{u}" for u in range(s0 // 2, s1 // 2)]
            pre_bar = None; fill = []; ff = 0; nf = 0
            hooks = {cfg.get('hook_at', 15): hook}
            if which == 4:
                def pre_bar(k):
                    if k != 16: return
                    g.force(['hh'])
                    g.poll(hload, [f"v_max_u32 {v(t0)}, {v(H)}, {v(H + 1)}", f"v_max3_u32 {v(t0)}, {v(t0)}, {v(H + 2)}, {v(H + 3)}",
                                   f"v_cmp_eq_u32 vcc, -1, {v(t0)}"], preloaded=True)
                    g.e(f"s_cmp_eq_u32 s{sTB}, 1"); g.e(f"s_cselect_b32 exec_lo, -1, 0xffff"); g.e("s_mov_b32 exec_hi, 0")
                    g.e(f"ds_write_b128 {v(vHHW)}, {v(H, 4)}")
                    g.e("s_mov_b64 exec, -1")
                    A.wait_lg_all()
            if which == 3:
                s3 = min(s0 for s0 in groups if s0 >= 20)
                groups[s3] = groups[s3] + [f"{XP}S_0", f"{XP}S_1"]
                fill = g.stats_in(XP, True); ff = s3 - 2
                if layer:
                    for i in range(4): fill.insert(0, lambda i=i: g.e(f"ds_read_b128 {v(BIG + 4 * i, 4)}, {v(vCSA)} offset:{768 + 32 * i}"))
                nf = -(-len(fill) // (32 - ff))
            if layer == 0 and which == 3: hooks[24] = lambda: g.opt_end(g.check_all(0x40, 0))
            if layer == 0 and which == 4:
                def csload():
                    lab = g.wave_begin(1)
                    A.raw(f"v_lshlrev_b32 v0, 4, {v(vLANE)}"); A.raw(f"s_mul_i32 s{sU1}, s{sJ}, 896")
                    for q in range(8):
                        A.raw(f"s_add_u32 s{sU0}, s{sU1}, {CSP + 7168 * q}")
                        g.e(f"buffer_load_dwordx4 {v(BIG + 4 * q, 4)}, v0, {srd(sWS)}, s{sU0} offen sc1")
                    g.opt_end(lab)
                hooks[18] = csload
            g.gemm32(steps, groups, acc, which == 3, ok=g.budget(cfg['winA'], lambda u: bool(u.get('aux')) or u['name'] in mine_n),
                     pre_bar=pre_bar, fill=fill, fill_from=ff, nfill=nf, hooks=hooks, nmove=2 if (layer, which) == (0, 3) else cfg['mv_small'])
            while fill: fill.pop(0)()
        if which == 4:
            um = g.unmoved([f"{P}W2_{u}" for u in range(16)])
            if um:
                g.barrier(um)
                for u in um: g.force_move(u)
            g.variants(sTB, body)
        else: body(0)
        g.banks.add({2: 'A1b', 3: 'A0b', 4: 'A1c'}[which])
        g.stamp(f"p{which}_{layer}_mm")
        PK = XB
        if which == 3:
            for f in g.gelu_ops(ACC0, 16, None, None, PK, True, csbuf=BIG): f()
            for r in range(8): g.e(f"v_min_u32 {v(PK + r)}, -2, {v(PK + r)}")
        else: g.pack16(acc, PK)
        f1 = ' sc1' if which == 2 and layer == 0 and cfg['first_sc1'] else ''
        g.store_x(PK, {2: sSTB, 3: sSTA, 4: sSTB}[which], "st", f1)
        if which == 3:
            g.e(f"s_add_u32 s{sT0}, s{sHHS}, {layer * 0x10000}")
            g.e(f"buffer_store_dwordx4 {v(PK, 4)}, {v(vHHST)}, {srd(sWS)}, s{sT0} offen sc1", tag="hh", lines=16)
            g.e(f"buffer_store_dwordx4 {v(PK + 4, 4)}, {v(vHHST)}, {srd(sWS)}, s{sT0} offen offset:32 sc1", tag="hh", lines=16)
        else: g.stats_out(acc, f1)
        g.stamp(f"p{which}_{layer}_epi")
        def mid():
            if which == 2 and layer == 0:
                g.ones()
                for u in range(16): g.force_move(f"aW1_{u}")
                g.variants(sTB, lambda tb: g.gemm32([g.wstep(f"aW1_{s_ // 2}", s_, x=('reg', XB)) for s_ in range(16 * tb, 16 * tb + 16)], {}, ACC0, True, dma=False))
                g.e(f"s_lshl_b32 s{sT0}, s{sTB}, 8"); g.e(f"s_add_u32 s{sT0}, s{sT0}, {HS - CST}"); g.e(f"v_add_u32 {v(t0)}, s{sT0}, {v(vCSA)}")
                for i in range(4): g.e(f"ds_write_b128 {v(t0)}, {v(ACC0 + 4 * i, 4)} offset:{32 * i}")
            if which == 3 and layer == 0: g.opt_end(g.check_all(0x40, 1))
            if which == 4 and layer == 0:
                lab = g.wave_begin(1)
                for st in (16, 8, 4):
                    for q in range(0, st, 2): g.e(f"v_pk_add_f32 {v(BIG + q, 2)}, {v(BIG + q, 2)}, {v(BIG + st + q, 2)}")
                A.raw(f"v_lshlrev_b32 {v(t0)}, 4, {v(vLANE)}"); A.raw(f"v_add_u32 {v(t0)}, {CST + 1024}, {v(t0)}")
                A.raw(f"ds_write_b128 {v(t0)}, {v(BIG, 4)}"); A.raw("s_waitcnt lgkmcnt(0)")
                g.opt_end(lab)
            if which == 3:
                r = TMP + 14
                for q in range(8):
                    g.e(f"v_pk_fma_f32 {v(ACC1 + 2 * q, 2)}, {v(RES + 2 * q, 2)}, {v(r, 2)}, {v(r, 2)} op_sel:[0,0,1] op_sel_hi:[1,0,1]")
                g.setup_xr32(1088); g.setup_hh(vHHLD, vHHW)
            if which == 4:
                for q in range(8): g.e(f"v_pk_add_f32 {v(RES + 2 * q, 2)}, {v(RES + 2 * q, 2)}, {v(ACC1 + 2 * q, 2)}")
                g.setup_xr32()
        f2 = which == 2 and layer == 0
        return g.handoff(6 * layer + which, ["st"], mid, need0=g.unmoved([f"aW1_{u}" for u in range(16)]) if f2 else [],
                         after_ack=(lambda: g.publish(0x40)) if f2 else None, nmv=0 if f2 else None)

    def p5(g, layer):
        A = g.A; P = 'ab'[layer]; t0, t1, t2 = vT; L = v(vLANE); cfg = g.cfg
        g.c(f"===== P5 layer {layer}: LN + W3 + gelu =====")
        XP = f"{P}5"; g.fineon = layer == 1
        xs = [g.uX(sRB, u, XP, allowed={u}) for u in range(16)]
        mine = [u for u in g.Q if u['name'].startswith(f"{P}W3a_")]; rest = [u for u in g.Q if u not in mine]
        S = g.uS(XP)
        for u in S + rest: u['allowed'] = None
        g.Q = mine + xs + S + rest
        for u in list(range(24, 56)) + list(range(cfg['w4pre'])):
            g.Q.append(g.uW('4', u, P))
            if u >= 24: g.stage(f"{P}W4_{u}", 'a', 8 * (u - 24), 'A0c' if u < 40 else 'A1d')
        g.pump(len(mine) + cfg['xfirst'])
        PK = XB; vC3 = XB + 15
        g.e(f"s_lshl_b32 s{sT0}, s{sODD}, 1"); g.e(f"v_add_u32 {v(vC3)}, s{sT0}, {v(vCSA)}")
        fill = []
        for ci, ch in enumerate('abc'):
            acc = (ACC0, ACC1)[ci & 1]
            steps = []; groups = {}
            for s_ in range(32):
                wu = f"{P}W3{ch}_{s_ // 2}"; xu = f"{XP}X_{s_ // 2}"
                st = g.wstep(wu, s_, xu=xu, rel=[])
                if ci == 0: st['x'] = ('lds', lambda xu=xu, s_=s_: g.slot[xu] * 4096 + (s_ & 1) * 2048, BIG + 4 * s_)
                else: st['x'] = ('reg', BIG + 4 * s_)
                if s_ & 1:
                    st['rel'].append(wu)
                    if ci == 0: st['rel'].append(xu)
                steps.append(st)
            gs = cfg['gs'] if ci == 0 else [0, 8, 16, 24]
            for n_, s0 in enumerate(gs):
                s1 = gs[n_ + 1] if n_ + 1 < len(gs) else 32
                groups[s0] = [f"{P}W3{ch}_{u}" for u in range(s0 // 2, s1 // 2)] + ([f"{XP}X_{u}" for u in range(s0 // 2, s1 // 2)] if ci == 0 else [])
            ff = 0; hooks = {}
            if ci == 0 and layer == 0 and cfg['w4_cold'] == 5: hooks[12] = g.cold_w4
            if ci == 0:
                groups[28] = groups.get(28, []) + [f"{XP}S_0", f"{XP}S_1"]; fill = g.stats_in(XP, False); ff = 26
            if ci == 2:
                ex = [g.alloc("ex0_" + P), g.alloc("ex1_" + P)]
                assert None not in ex
            g.gemm32(steps, groups, acc, True, fill=fill, nfill=-(-len(fill) // (31 - ff)), fill_from=ff, nmove=2, hooks=hooks)
            while fill: fill.pop(0)()
            if ci < 2: g.banks.add(('A0c', 'A1d')[ci])
            if layer == 0 and ci == 2: g.touch3(sWQ, 48, 1024, 3)
            g.stamp(f"p5_{layer}_{ch}")
            fill = g.gelu_ops(acc, 16, vC3, 1024 + 256 * ci, PK, False)
            fill.append(lambda ci=ci: g.e(f"s_add_u32 s{sT3}, s{sH2F}, {ci * 8192}"))
            fill.append(lambda: g.store_x(PK, sT3, "st", ' sc1' if cfg['h2_sc1'] > layer else ''))
        hreg = [[XB + 8, XB + 9, XB + 10], [XB + 11, XB + 12, XB + 13]]
        for e_ in (0, 1):
            d = hreg[e_][0]
            g.e(f"v_lshrrev_b32 {v(t0)}, 5, {L}"); g.e(f"v_bfe_u32 {v(t1)}, {L}, 2, 2")
            g.e(f"v_lshl_add_u32 {v(d)}, {v(t0)}, 2, {v(t1)}")
            if e_: g.e(f"v_add_u32 {v(d)}, 8, {v(d)}")
            g.e(f"v_lshlrev_b32 {v(d)}, 6, {v(d)}")
            g.e(f"v_bfe_u32 {v(t0)}, {L}, 4, 1"); g.e(f"v_lshl_add_u32 {v(d)}, {v(t0)}, 5, {v(d)}")
            g.e(f"v_and_b32 {v(t0)}, 3, {L}"); g.e(f"v_lshl_add_u32 {v(d)}, {v(t0)}, 3, {v(d)}")
            g.windows(hreg[e_])
        acc = ACC1; vE = XB + 14
        g.e(f"s_mul_i32 s{sT0}, s{sTB}, {(ex[1] - ex[0]) * 4096}"); g.e(f"s_add_u32 s{sT0}, s{sT0}, {ex[0] * 4096}")
        g.e(f"v_lshlrev_b32 {v(vE)}, 4, {L}"); g.e(f"v_add_u32 {v(vE)}, s{sT0}, {v(vE)}")
        g.auto_until([f"{P}W3d_{u}" for u in range(8)])
        g.barrier([f"{P}W3d_{u}" for u in range(8)])
        A.wait_lg_all()
        def half(nt):
            steps = []
            for i in range(16):
                s_ = 16 * nt + i; wu = f"{P}W3d_{s_ // 4}"
                steps.append(dict(w=(hreg, lambda wu=wu, s_=s_: g.slot[wu] * 4096 + (s_ & 3) * 1024), wu=wu, x=('reg', BIG + 4 * s_), rel=[]))
            f2 = list(fill)
            g.gemm32(steps, {}, acc, True, fill=f2, nfill=-(-len(f2) // 16))
            while f2: f2.pop(0)()
            snd = acc + 8 * (1 - nt)
            g.e(f"ds_write_b128 {v(vE)}, {v(snd, 4)} offset:{2048 * nt}")
            g.e(f"ds_write_b128 {v(vE)}, {v(snd + 4, 4)} offset:{2048 * nt + 1024}")
            for r in range(8):
                if nt: g.e(f"v_mov_b32 {v(acc + r)}, {v(acc + 8 + r)}")
                else: g.now += 4
        g.variants(sNT, half)
        for u in range(8): g.release(f"{P}W3d_{u}")
        g.barrier()
        g.stamp(f"p5_{layer}_d")
        g.e(f"s_xor_b32 s{sT0}, s{sNT}, 1"); g.e(f"s_lshl_b32 s{sT0}, s{sT0}, 11"); g.e(f"v_add_u32 {v(vE)}, s{sT0}, {v(vE)}")
        g.e(f"ds_read_b128 {v(acc + 8, 4)}, {v(vE)}", tag="ex0_" + P); g.e(f"ds_read_b128 {v(acc + 12, 4)}, {v(vE)} offset:1024", tag="ex0_" + P)
        g.release("ex0_" + P); g.release("ex1_" + P)
        g.e(f"s_lshl_b32 s{sT0}, s{sHALF}, 1"); g.e(f"s_lshl_b32 s{sT1}, s{sNT}, 6"); g.e(f"s_sub_u32 s{sT0}, s{sT0}, s{sT1}")
        g.e(f"v_add_u32 {v(vC3)}, s{sT0}, {v(vCSA)}")
        ops = g.gelu_ops(acc, 8, vC3, 1024, PK, True)
        ops.pop(0)(); ops.pop(0)()
        for q in range(4): g.e(f"v_pk_add_f32 {v(acc + 2 * q, 2)}, {v(acc + 2 * q, 2)}, {v(acc + 8 + 2 * q, 2)}")
        for f in ops: f()
        g.e(f"s_lshl_b32 s{sT0}, s{sNT}, 11"); g.e(f"s_sub_u32 s{sT3}, s{sH2H}, s{sT0}")
        g.e(f"buffer_store_dwordx4 {v(PK, 4)}, {v(vST)}, {srd(sWS)}, s{sT3} offen{' sc1' if cfg['h2_sc1'] > layer else ''}", tag="st")
        g.stamp(f"p5_{layer}_epi")
        return g.handoff(6 * layer + 5, ["st"], (lambda: g.setup_wr(16, True, vWQ)) if layer == 0 else None)

    def p6(g, layer):
        A = g.A; P = 'ab'[layer]; t0, t1, t2 = vT; L = v(vLANE); cfg = g.cfg
        g.c(f"===== P6 layer {layer}: h2 @ W4 =====")
        XP = f"{P}6"; g.fineon = layer == 1
        pend = {u['name']: u for u in g.Q}
        q = []; late = [u for u in g.Q if int(u['name'].split('_')[1]) >= 24]
        for u in range(56):
            q.append(dict(g.uX(sRA, u, XP), lat=650 if cfg['h2_sc1'] > layer else 330))
            nm = f"{P}W4_{u}"
            if u < 24:
                if nm in pend: q.append(pend[nm])
                elif u >= cfg['w4pre']: q.append(g.uW('4', u, P))
            if u >= 8 and late and not (u < 24 and (nm in pend or u >= cfg['w4pre'])): q.append(late.pop(0))
        assert not late
        qkv = []
        if layer == 0:
            g.banks.discard('QKV'); g.banks.add('VQ')
            order = [('q', s_) for s_ in range(16)] + [(m, s_) for s_ in range(16) for m in 'kv'] if cfg['q_first'] else [(m, s_) for s_ in range(16) for m in 'qkv']
            for m, s_ in order:
                qkv.append(g.uW(m, s_, 'b', allowed=RING))
                if m == 'q': g.stage(f"bWq_{s_}", 'v', 48 + 4 * s_ if s_ < 8 else 224 + 4 * (s_ - 8), 'VQ', 16)
                else: g.stage(f"bW{m}_{s_}", 'a', (0 if m == 'k' else 64) + 4 * s_, 'QKV', 16)
            n_in = cfg['qkv_in']; st = len(q) - cfg['qkv_gap'] * n_in
            for n_ in range(n_in): q.insert(st + (cfg['qkv_gap'] + 1) * n_, dict(qkv.pop(0), woven=1))
        g.Q = q + qkv
        g.pump(8)
        steps = []; groups = {}
        for s_ in range(112):
            wu = f"{P}W4_{s_ // 2}"; xu = f"{XP}X_{s_ // 2}"
            steps.append(g.wstep(wu, s_, xu=xu, x=('lds', lambda xu=xu, s_=s_: g.slot[xu] * 4096 + (s_ & 1) * 2048, None), rel=[wu, xu] if s_ & 1 else []))
        gs = [0, 4] + list(range(8, 104, 8)) + [104, 108]
        for n_, s0 in enumerate(gs):
            s1 = gs[n_ + 1] if n_ + 1 < len(gs) else 112
            groups[s0] = [f"{P}W4_{u}" for u in range(s0 // 2, s1 // 2)] + [f"{XP}X_{u}" for u in range(s0 // 2, s1 // 2)]
        hooks = {80: lambda: g.banks.add('QKV')}
        vHX = TMP + 4
        if layer == 0: hooks[100] = lambda: g.setup_hx(vHX)
        g.gemm32(steps, groups, RES, False, ok=g.budget(cfg['qkvA'], lambda u: bool(u.get('aux')) or 'W4' in u['name'] or u.get('woven')), hooks=hooks, nmove=2)
        g.stamp(f"p6_{layer}_mm")
        PK = XB
        g.pack16(RES, PK)
        if layer == 1:
            g.e(f"v_and_b32 {v(t0)}, 31, {L}"); g.e(f"v_lshl_add_u32 {v(t0)}, s{sTB}, 5, {v(t0)}"); g.e(f"v_lshlrev_b32 {v(t0)}, 10, {v(t0)}")
            g.e(f"v_lshrrev_b32 {v(t1)}, 5, {L}"); g.e(f"v_lshl_add_u32 {v(t0)}, {v(t1)}, 4, {v(t0)}")
            g.e(f"s_lshl_b32 s{sT0}, s{sC}, 16"); g.e(f"s_lshl_b32 s{sT1}, s{sJ}, 7"); g.e(f"s_add_u32 s{sT0}, s{sT0}, s{sT1}")
            g.e(f"s_lshl_b32 s{sT1}, s{sNT}, 6"); g.e(f"s_add_u32 s{sT0}, s{sT0}, s{sT1}")
            for p in (0, 4):
                g.e(f"v_permlane32_swap_b32 {v(PK + p)}, {v(PK + p + 2)}"); g.e(f"v_permlane32_swap_b32 {v(PK + p + 1)}, {v(PK + p + 3)}")
                g.e(f"buffer_store_dwordx4 {v(PK + p, 4)}, {v(t0)}, {srd(sOUT)}, s{sT0} offen offset:{8 * p}")
            return g.finish()
        g.store_x(PK, sSTB, "st")
        g.e(f"buffer_store_dwordx4 {v(PK, 4)}, {v(vHX)}, {srd(sWS)}, 0 offen sc1", tag="hx", lines=16)
        g.e(f"buffer_store_dwordx4 {v(PK + 4, 4)}, {v(vHX)}, {srd(sWS)}, 0 offen offset:512 sc1", tag="hx", lines=16)
        g.stamp(f"p6_{layer}_epi")
        g.banks = {'QKV', 'VQ', 'A1'}
        def mid():
            g.e(f"v_and_b32 {v(t0)}, 15, {L}"); g.e(f"v_lshlrev_b32 {v(vXR[0])}, 4, {v(t0)}")
            g.e(f"v_lshrrev_b32 {v(t1)}, 4, {L}"); g.e(f"v_lshl_add_u32 {v(vXR[0])}, {v(t1)}, 10, {v(vXR[0])}")
        if g.handoff(6, ["st"], mid): return True
        pend = {u['name']: u for u in g.Q}; q = []; lead = cfg['xlead']
        xs = [g.uX(sRB, u, 'b1', allowed={u}) for u in range(16)]
        for s_ in range(16 + lead):
            if s_ < 16: q.append(xs[s_])
            if s_ >= lead:
                for m in 'qkv':
                    if f"bW{m}_{s_ - lead}" in pend: q.append(pend[f"bW{m}_{s_ - lead}"])
        g.Q = q
        g.pump(cfg['xfirst'])
        return False

    def build(g):
        g.done = False
        g.prologue()
        t0, t1, _ = vT; L = v(vLANE)
        g.setup_wr(16, False, vWQ); g.setup_wr(32, True)
        g.e(f"v_and_b32 {v(t0)}, 15, {L}"); g.e(f"v_lshrrev_b32 {v(t1)}, 4, {L}"); g.e(f"v_xor_b32 {v(t1)}, {v(t1)}, {v(t0)}")
        g.e(f"v_lshlrev_b32 {v(t0)}, 10, {v(t0)}")
        for k in range(4):
            g.e(f"v_xor_b32 {v(252 + k)}, {4 * k}, {v(t1)}"); g.e(f"v_lshl_add_u32 {v(248 + k)}, {v(252 + k)}, 4, {v(t0)}")
            g.e(f"v_add_u32 {v(252 + k)}, 0x10000, {v(248 + k)}")
        for layer in (0, 1):
            for f in (lambda: g.p1(layer), lambda: g.small(layer, 2), lambda: g.small(layer, 3), lambda: g.small(layer, 4), lambda: g.p5(layer), lambda: g.p6(layer)):
                if f(): break
            if g.done: break
        g.A.fix_hazards()
        if g.cfg.get('align', 1): g.al = align8(g.A, '.set CODE_BYTES, 0x12340\n', g.cfg.get('minrun', 5))
        body = g.A.text()
        hdr = open(os.path.join(os.path.dirname(__file__), "header.txt")).read()
        out = hdr + f"""; @launch grid=(256,1,1) block=(256,1,1) lds={LDS_BYTES}
.amdgcn_target "amdgcn-amd-amdhsa--gfx950"
.text
.globl {NAME}_kernel
.p2align 8
.type {NAME}_kernel,@function
{NAME}_kernel:
.set CODE_BYTES, L_END - {NAME}_kernel - 1024
""" + body + f"""L_END:
  s_endpgm
.section .rodata,"a"
.p2align 6
.amdhsa_kernel {NAME}_kernel
  .amdhsa_next_free_vgpr 512
  .amdhsa_next_free_sgpr 96
  .amdhsa_accum_offset 256
  .amdhsa_group_segment_fixed_size 0
  .amdhsa_kernarg_size 88
  .amdhsa_user_sgpr_count 2
  .amdhsa_user_sgpr_kernarg_segment_ptr 1
  .amdhsa_system_sgpr_workgroup_id_x 1
.end_amdhsa_kernel
"""
        return out


if __name__ == "__main__":
    import argparse, json
    ap = argparse.ArgumentParser()
    ap.add_argument("-o", default=f"cdna_kernels/{NAME}.s")
    ap.add_argument("--stop", type=int); ap.add_argument("--prof", action="store_true")
    ap.add_argument("--cfg", default="{}")
    x = ap.parse_args()
    g = Gen(stop=x.stop, prof=x.prof, cfg=json.loads(x.cfg))
    s = g.build(); open(x.o, "w").write(s)
    if x.prof: open(x.o[:-2] + ".stamps", "w").write("\n".join(g.stamps))
    print("wrote", x.o, len(s), "bytes,", len(g.A.L), "lines, model end", int(g.now), "align", getattr(g, 'al', None))
```
